```python
import torch

def _softmax(x, axis=-1):
    return torch.softmax(x, dim=axis)
def _gelu(x):
    return torch.nn.functional.gelu(x, approximate="tanh")
def _silu(x):
    return torch.nn.functional.silu(x)
def _sigmoid(x):
    return torch.sigmoid(x)
def _layernorm(x, axis=-1, eps=1e-5):
    m = x.mean(dim=axis, keepdim=True)
    v = x.var(dim=axis, keepdim=True, unbiased=False)
    return (x - m) / torch.sqrt(v + eps)
def _scatter_add(tgt, idx, src, axis=0):
    return tgt.clone().index_add_(axis, idx, src)
def _segment_sum(src, seg, n):
    out = torch.zeros((n,) + src.shape[1:], dtype=src.dtype)
    return out.index_add_(0, seg, src)
def _pad(x, pw):
    flat = tuple(v for pair in reversed(pw) for v in pair)
    return torch.nn.functional.pad(x, flat)

kernel_name = 'parallel_sum__sliding_block__dense_activation_gelu__prompt'

def setup_inputs():

    _w = (lambda a: (lambda t: t.to(torch.bfloat16) if t.is_floating_point() else t)(torch.as_tensor(a)))
    def _A_setup():
        B, S, D = 1, 2048, 640
        return {
            "x": _w((lambda *s: torch.randn(*s, dtype=torch.bfloat16) * 0.05)(B, S, D)),
            "wqkv": _w((lambda *s: torch.randn(*s, dtype=torch.bfloat16) * 0.05)(D, 3 * D)),
            "wo": _w((lambda *s: torch.randn(*s, dtype=torch.bfloat16) * 0.05)(D, D)),
        }
    _A_in = _A_setup()

    def _B_setup():
        B, S, D, F = 1, 2048, 640, 1536
        return {
            "x": _w((lambda *s: torch.randn(*s, dtype=torch.bfloat16) * 0.05)(B, S, D)),
            "w1": _w((lambda *s: torch.randn(*s, dtype=torch.bfloat16) * 0.8)(D, F) * (D ** -0.5)),
            "b1": _w((lambda *s: torch.randn(*s, dtype=torch.bfloat16) * 0.8)(F) * 0.01),
            "w2": _w((lambda *s: torch.randn(*s, dtype=torch.bfloat16) * 0.8)(F, D) * (F ** -0.5)),
            "b2": _w((lambda *s: torch.randn(*s, dtype=torch.bfloat16) * 0.8)(D) * 0.01),
        }
    _B_in = _B_setup()

    return {
        "A_x": _A_in["x"],
        "A_wqkv": _A_in["wqkv"],
        "A_wo": _A_in["wo"],
        "B_x": _B_in["x"],
        "B_w1": _B_in["w1"],
        "B_b1": _B_in["b1"],
        "B_w2": _B_in["w2"],
        "B_b2": _B_in["b2"],
    }

def reference(A_x, A_wqkv, A_wo, B_x, B_w1, B_b1, B_w2, B_b2):
    def _A_ref(x, wqkv, wo):
        B, S, D = x.shape
        H = 32; Dh = D // H; W = 256
        qkv = (lambda x, *d: x.permute(*d))((x @ wqkv).reshape(B, S, 3, H, Dh), 2, 0, 3, 1, 4)
        q, k, v = qkv[0], qkv[1], qkv[2]
        scores = torch.einsum("bhqd,bhkd->bhqk", q, k) * (Dh ** -0.5)
        idx = torch.arange(S)
        mask = (idx[:, None] - idx[None, :] >= 0) & (idx[:, None] - idx[None, :] < W)
        scores = torch.where(mask[None, None], scores, -1e9)
        p = _softmax(scores, axis=-1)
        o = torch.einsum("bhqk,bhkd->bhqd", p, v)
        return (lambda x, *d: x.permute(*d))(o, 0, 2, 1, 3).reshape(B, S, D) @ wo

    def _B_ref(x, w1, b1, w2, b2):
        h = torch.einsum("bsd,df->bsf", x, w1) + b1
        h = _gelu(h)
        return torch.einsum("bsf,fd->bsd", h, w2) + b2

    x = A_x
    xn = _layernorm(x, axis=-1)
    return x + _A_ref(xn, A_wqkv, A_wo) + _B_ref(xn, B_w1, B_b1, B_w2, B_b2)
```

```python
import re

class Asm:
    def __init__(self):
        self.lines = []
    def __call__(self, s):
        for l in s.split("\n"):
            l = l.strip()
            if l: self.lines.append(l)
    def comment(self, s): self.lines.append("; " + s)
    def label(self, l): self.lines.append(l + ":")
    def text(self): return "\n".join(self.lines) + "\n"

def vr(a, n=1):
    return f"v{a}" if n == 1 else f"v[{a}:{a+n-1}]"
def sr(a, n=1):
    return f"s{a}" if n == 1 else f"s[{a}:{a+n-1}]"

class Regs:
    def __init__(self, start, end, kind="v"):
        self.p = start; self.end = end; self.kind = kind; self.names = {}; self.hi = start
    def alloc(self, n=1, align=1, name=None):
        p = (self.p + align - 1)//align*align
        assert p + n <= self.end, f"out of {self.kind} regs: need {n} at {p} (end {self.end}) name={name}"
        self.p = p + n; self.hi = max(self.hi, self.p)
        if name: self.names[name] = p
        return p
    def mark(self): return self.p
    def release(self, m): self.p = m

_reg_re = re.compile(r"(?<![\w.])([vsa])(?:\[(\d+):(\d+)\]|(\d+))(?![\w])")
def _regs(tok):
    tok = tok.strip()
    neg = tok
    m = re.fullmatch(r"-?\|?(?:abs\()?([vsa])(?:\[(\d+):(\d+)\]|(\d+))\)?\|?", tok)
    if m:
        k = m.group(1)
        if m.group(4) is not None: return [(k, int(m.group(4)))]
        return [(k, i) for i in range(int(m.group(2)), int(m.group(3))+1)]
    if tok in ("vcc",): return [("s", "vcc")]
    if tok in ("vcc_lo","vcc_hi"): return [("s", "vcc")]
    if tok == "exec": return [("s", "exec")]
    if tok == "m0": return [("s", "m0")]
    return []

TRANS = ("v_exp_f32","v_log_f32","v_rcp_f32","v_rsq_f32","v_sqrt_f32","v_sin_f32","v_cos_f32","v_rcp_iflag_f32")
def mfma_passes(op):
    if "32x32" in op: return 8
    if "16x16" in op: return 4
    raise ValueError(op)

class I:
    __slots__=("text","op","kind","wr","rd","ws","passes","srcC","srcAB","D","lds","storedata")
def parse(line):
    s = line.split(";")[0].strip()
    it = I(); it.text = line; it.wr=[]; it.rd=[]; it.ws=1; it.kind="other"; it.passes=0; it.srcC=[]; it.srcAB=[]; it.D=[]; it.lds=False; it.storedata=[]
    if not s or s.endswith(":") or s.startswith("."):
        it.op = None; it.ws = 0; it.kind = "label" if s.endswith(":") else "none"; return it
    parts = s.split(None, 1)
    op = parts[0]; it.op = op
    rest = parts[1] if len(parts) > 1 else ""
    ops = [o.strip() for o in rest.split(",")] if rest else []
    clean = []
    for o in ops:
        clean.append(o.split()[0] if o.split() else o)
    mods = rest
    b = op.replace("_e32","").replace("_e64","").replace("_dpp","")
    if op == "s_nop":
        it.ws = int(ops[0], 0) + 1; it.kind="nop"; return it
    if op.startswith("v_mfma"):
        it.kind="mfma"; it.passes = mfma_passes(op)
        it.D = _regs(clean[0]); it.srcAB = _regs(clean[1]) + _regs(clean[2]); it.srcC = _regs(clean[3])
        it.wr = it.D; it.rd = it.srcAB + it.srcC
        return it
    if op.startswith("v_"):
        it.kind = "trans" if b in TRANS else "valu"
        if b.startswith("v_permlane") and "swap" in b:
            it.kind="permlane"; it.wr = _regs(clean[0])+_regs(clean[1]); it.rd = list(it.wr); return it
        if b in ("v_readfirstlane_b32","v_readlane_b32"):
            it.kind="readlane"; it.wr=_regs(clean[0]); it.rd = sum((_regs(c) for c in clean[1:]), []); return it
        if b.startswith("v_cmp"):
            it.wr=_regs(clean[0]); it.rd=sum((_regs(c) for c in clean[1:]), [])
            if b.startswith("v_cmpx"): it.wr += [("s","exec")]
            return it
        if b in ("v_add_co_u32","v_sub_co_u32","v_addc_co_u32","v_subb_co_u32"):
            it.wr=_regs(clean[0])+_regs(clean[1]); it.rd=sum((_regs(c) for c in clean[2:]), []); return it
        it.wr=_regs(clean[0]); it.rd=sum((_regs(c) for c in clean[1:]), [])
        if b in ("v_fmac_f32","v_dot2c_f32_bf16","v_writelane_b32","v_pk_fmac_f16"): it.rd += it.wr
        if "dpp" in op or "row_" in mods or "quad_perm" in mods: it.kind="dpp"
        if b.startswith("v_dot"): it.kind="dot"; it.srcC = []; it.D = list(it.wr)
        return it
    if op.startswith("ds_"):
        it.kind="ds"
        if op.startswith("ds_read") or op.startswith("ds_bpermute") or op.startswith("ds_permute") or op.startswith("ds_swizzle") or "_rtn" in op:
            it.wr=_regs(clean[0]); it.rd=sum((_regs(c) for c in clean[1:]), [])
        else:
            it.rd=sum((_regs(c) for c in clean), [])
        return it
    if op.startswith("buffer_") or op.startswith("global_"):
        it.kind="vmem"
        islds = bool(re.search(r"\blds\b", mods))
        it.lds = islds
        if op in ("buffer_wbl2","buffer_inv"): return it
        if "load" in op and not islds:
            it.wr=_regs(clean[0]); it.rd=sum((_regs(c) for c in clean[1:]), [])
        elif "load" in op:
            it.rd=sum((_regs(c) for c in clean), [])
        elif "store" in op:
            it.rd=sum((_regs(c) for c in clean), [])
            if "x4" in op or "x3" in op:
                it.storedata = _regs(clean[0]) if op.startswith("buffer_") else _regs(clean[1])
        else:
            it.rd=sum((_regs(c) for c in clean), [])
            if "sc0" in mods: it.wr=_regs(clean[0])
        return it
    if op.startswith("s_"):
        it.kind="salu"
        if op.startswith("s_cbranch") or op=="s_branch": it.kind="branch"; it.rd=[]; it.wr=[]; it.D=clean[0]; return it
        if op in ("s_waitcnt","s_barrier","s_endpgm","s_setprio","s_sleep","s_sethalt"): return it
        if op.startswith("s_cmp") or op.startswith("s_bitcmp"):
            it.rd=sum((_regs(c) for c in clean), []); return it
        if op.startswith("s_load") or op.startswith("s_memtime") or op.startswith("s_memrealtime") or op.startswith("s_getreg"):
            it.wr=_regs(clean[0]); it.rd=sum((_regs(c) for c in clean[1:]), []); return it
        it.wr=_regs(clean[0]); it.rd=sum((_regs(c) for c in clean[1:]), [])
        if "saveexec" in op: it.wr += [("s","exec")]
        return it
    return it

def need(prod, cls, it):
    return 0

class State:
    def __init__(self):
        self.w = {}
        self.cread = {}
        self.sd = {}
    def copy(self):
        n = State(); n.w = {k:list(v) for k,v in self.w.items()}; n.cread={k:list(v) for k,v in self.cread.items()}; n.sd=dict(self.sd); return n
    def age(self, d):
        for t in (self.w, self.cread):
            for k in list(t):
                t[k][-1 if t is self.cread else 2] += d
                if t[k][-1 if t is self.cread else 2] > 24: del t[k]
        for k in list(self.sd):
            self.sd[k] += d
            if self.sd[k] > 4: del self.sd[k]
    def merge(self, o):
        for k,v in o.w.items():
            if k not in self.w or v[2] < self.w[k][2] or (v[0]=="mfma" and self.w[k][0]!="mfma"):
                if k in self.w and self.w[k][0]=="mfma" and v[0]!="mfma" : continue
                self.w[k]=list(v)
        for k,v in o.cread.items():
            if k not in self.cread or v[1] < self.cread[k][1]: self.cread[k]=list(v)
        for k,v in o.sd.items():
            if k not in self.sd or v < self.sd[k]: self.sd[k]=v

def required(st, it):
    req = 0
    def upd(n, age):
        nonlocal req
        if n - age > req: req = n - age
    isvalu = it.kind in ("valu","trans","permlane","readlane","dpp","dot")
    for r in it.rd:
        w = st.w.get(r)
        if not w: continue
        k, p, age, D = w
        if k == "mfma":
            if it.kind == "mfma":
                if r in it.srcAB: upd({4:8,8:12}[p], age)
                if r in it.srcC:
                    if tuple(it.srcC) == D and it.passes == p: pass
                    else: upd({4:6,8:10}[p], age)
            elif isvalu or it.kind in ("vmem","ds"):
                upd({4:8,8:12}[p], age)
        elif k in ("valu","trans","permlane","dpp","readlane","dot"):
            if r[0] == "v":
                if k == "dot":
                    if it.kind == "dot" and r in it.wr: pass
                    else: upd(3, age)
                if it.kind == "mfma": upd(2, age)
                if it.kind == "permlane": upd(2, age)
                if it.kind == "readlane": upd(1, age)
                if it.kind == "dpp": upd(2, age)
                if k == "trans" and it.kind != "trans" and (isvalu or it.kind=="mfma"): upd(1, age)
                if k == "trans" and it.kind in ("vmem","ds"): upd(1, age)
            else:
                if it.kind == "vmem": upd(5, age)
                if isvalu: upd(4 if it.kind=="readlane" else 2, age)
                if it.kind == "mfma" and r == ("s","exec"): upd(4, age)
                if it.kind in ("salu","branch"): upd(1, age)
        elif k == "salu":
            if r == ("s","m0") and it.kind=="vmem" and it.lds: upd(1, age)
    if it.kind == "vmem" and it.lds:
        w = st.w.get(("s","m0"))
        if w and w[0]=="salu": upd(1, w[2])
    w = st.w.get(("s","exec"))
    if w and w[0] in ("valu",) :
        if it.kind=="mfma": upd(4, w[2])
        if it.kind in ("readlane","permlane"): upd(4, w[2])
        if it.kind=="dpp": upd(5, w[2])
    if it.kind=="branch" and ("vcc" in it.op):
        w = st.w.get(("s","vcc"))
        if w and w[0] in ("valu",): upd(5, w[2])
    for r in it.wr:
        w = st.w.get(r)
        if w and w[0]=="dot" and it.kind != "dot": upd(3, w[2])
        if w and w[0]=="mfma":
            if it.kind == "mfma":
                if not (tuple(it.D)==w[3] and it.passes==w[1]): upd({4:6,8:10}[w[1]], w[2])
            else:
                upd({4:8,8:12}[w[1]], w[2])
        if isvalu or it.kind in ("vmem","ds"):
            c = st.cread.get(r)
            if c: upd({4:3,8:7}[c[0]], c[1])
            if r in st.sd: upd(2, st.sd[r])
    return req

def apply(st, it):
    st.age(it.ws)
    for r in it.wr:
        k = it.kind
        if k in ("ds","vmem"):
            st.w.pop(r, None); continue
        if k == "salu": k = "salu"
        st.w[r] = [k, it.passes, 0, tuple(it.D) if it.kind=="mfma" else ()]
    if it.kind == "mfma":
        for r in it.srcC: st.cread[r] = [it.passes, 0]
    for r in it.storedata: st.sd[r] = 0

def hazard_pass(lines, verbose=False):
    items = [parse(l) for l in lines]
    inserted = 0
    changed = True
    iters = 0
    while changed:
        changed = False; iters += 1
        labels = {it.text.split(";")[0].strip()[:-1]: i for i, it in enumerate(items) if it.kind=="label"}
        pend = {}
        for sweep in range(2):
            st = State()
            i = 0
            out_insert = None
            while i < len(items):
                it = items[i]
                if it.kind == "label":
                    nm = it.text.split(";")[0].strip()[:-1]
                    if nm in pend: st.merge(pend[nm])
                elif it.op is not None:
                    r = required(st, it)
                    if r > 0:
                        nop = parse(f"s_nop {r-1}")
                        items.insert(i, nop); inserted += 1
                        changed = True
                        labels = {x.text.split(";")[0].strip()[:-1]: j for j, x in enumerate(items) if x.kind=="label"}
                        apply(st, nop); i += 1
                    apply(st, it)
                    if it.kind == "branch":
                        tgt = it.D
                        s2 = st.copy()
                        if tgt in pend: pend[tgt].merge(s2)
                        else: pend[tgt] = s2
                        if it.op == "s_branch": st = State()
                    if it.op == "s_endpgm": st = State()
                i += 1
        assert iters < 20
    if verbose: print(f"hazard pass: inserted {inserted} s_nop")
    return [it.text for it in items]
```

```python
from common import *
ATT_LDS = 0
NEGBIG = -1.0e30

class VM:
    def __init__(self): self.q = []
    def issue(self, tag): self.q.append(tag)
    def wait(self, A, tag):
        if tag not in self.q: return
        i = max(k for k, t in enumerate(self.q) if t == tag)
        n = len(self.q) - 1 - i
        A(f"s_waitcnt vmcnt({n})")
        self.q = self.q[i+1:]
    def copy(self):
        v = VM(); v.q = list(self.q); return v

def att_body(A, V, Sg, sWS, s_rb, s_head, v_lane, ST, tagp="att", store_mods="", pre_issue=None):
    l = v_lane
    s_t = Sg.alloc(4); s_kb = Sg.alloc(10); s_imin = Sg.alloc(); s_qa = Sg.alloc(); s_qb = Sg.alloc()
    s_par = Sg.alloc(); s_om = Sg.alloc(); s_oh = Sg.alloc()
    sHH = Sg.alloc(2,2); sVM = Sg.alloc(2,2); sLO = Sg.alloc(2,2); sC = Sg.alloc(16,2)
    KM = V.alloc(40,4); KH = V.alloc(10,2); VB = V.alloc(32,4)
    QM = V.alloc(8,4); QH0 = V.alloc(4,2); QH1 = V.alloc(4,2)
    S_ = V.alloc(32,4); O_ = V.alloc(32,4); CN = V.alloc(32,4); M8 = V.alloc(16,4); M0 = V.alloc(16,4); P_ = V.alloc(16,4)
    mq = V.alloc(4,2)
    vV0 = V.alloc(); vV1 = V.alloc()
    vt = CN; vK = CN+4; vKh = CN+5
    vm = VM()
    A(f"""s_and_b32 s{s_par}, s{s_head}, 1
    s_lshr_b32 s{s_t}, s{s_head}, 1
    s_mul_i32 s{s_t}, s{s_t}, 5
    s_add_u32 s{s_oh}, s{s_t}, 2
    s_mul_i32 s{s_om}, s{s_par}, 3
    s_add_u32 s{s_om}, s{s_om}, s{s_t}
    s_lshl_b32 s{s_t+1}, s{s_rb}, 1
    s_mul_i32 s{s_qa}, s{s_t+1}, 40960
    s_add_u32 s{s_qb}, s{s_qa}, 40960
    s_sub_i32 s{s_imin}, 8, s{s_t+1}
    s_max_i32 s{s_imin}, s{s_imin}, 0
    s_mov_b32 s{sHH}, 0
    s_mov_b32 s{sHH+1}, -1
    s_mov_b32 s{sLO}, -1
    s_mov_b32 s{sLO+1}, 0
    s_mov_b32 s{sVM}, 0xfffff
    s_mov_b32 s{sVM+1}, 0xfffff""")
    A(f"""v_lshlrev_b32 v{vt}, 4, v{l}
    v_and_b32 v{vt+1}, 31, v{l}
    v_lshlrev_b32 v{vt+1}, 4, v{vt+1}
    s_lshl_b32 s{s_t}, s{s_par}, 3
    v_add_u32 v{vt+1}, s{s_t}, v{vt+1}
    s_lshl_b32 s{s_t}, s{s_om}, 9
    s_lshl_b32 s{s_t+1}, s{s_oh}, 9
    v_add_u32 v{vt}, s{s_t}, v{vt}
    v_add_u32 v{vt+1}, s{s_t+1}, v{vt+1}""")
    assert QF == 0
    A(f"""buffer_load_dwordx4 v[{QM}:{QM+3}], v{vt}, s[{sWS}:{sWS+3}], s{s_qa} offen
    buffer_load_dwordx4 v[{QM+4}:{QM+7}], v{vt}, s[{sWS}:{sWS+3}], s{s_qb} offen
    buffer_load_dwordx2 v[{QH0}:{QH0+1}], v{vt+1}, s[{sWS}:{sWS+3}], s{s_qa} offen
    buffer_load_dwordx2 v[{QH0+2}:{QH0+3}], v{vt+1}, s[{sWS}:{sWS+3}], s{s_qb} offen""")
    for _ in range(4): vm.issue("Q")
    A(f"""v_add_u32 v{vK}, {KF}, v{vt}
    v_lshrrev_b32 v{vt+2}, 5, v{l}
    v_mul_u32_u24 v{vt+3}, 40960, v{vt+2}
    v_add_u32 v{vKh}, {KF}, v{vt+1}
    v_add_u32 v{vKh}, v{vKh}, v{vt+3}
    s_lshl_b32 s{s_t+1}, s{s_rb}, 1
    s_sub_i32 s{s_t+1}, s{s_t+1}, 8""")
    for i in range(9, -1, -1):
        A(f"""s_add_i32 s{s_kb+i}, s{s_t+1}, {i}
        s_max_i32 s{s_kb+i}, s{s_kb+i}, 0
        s_mul_i32 s{s_kb+i}, s{s_kb+i}, 40960""")
        if i & 1 == 0:
            p = i >> 1
            A(f"buffer_load_dwordx2 v[{KH+2*p}:{KH+2*p+1}], v{vKh}, s[{sWS}:{sWS+3}], s{s_kb+i} offen"); vm.issue(f"KH{p}")
            for ii in (i+1, i):
                A(f"buffer_load_dwordx4 v[{KM+4*ii}:{KM+4*ii+3}], v{vK}, s[{sWS}:{sWS+3}], s{s_kb+ii} offen"); vm.issue(f"K{ii}")
    A(f"""v_and_b32 v{vt}, 31, v{l}
    v_add_u32 v{vt+1}, 4, v{vt}
    v_add_u32 v{vt+3}, -16, v{vt}
    v_cmp_gt_u32 vcc, 16, v{vt}
    v_cndmask_b32_e64 v{vt+1}, v{vt+3}, v{vt+1}, vcc
    s_cmp_eq_u32 s{s_par}, 1
    s_cselect_b64 s[{sC}:{sC+1}], -1, 0
    v_cndmask_b32_e64 v{vt}, v{vt}, v{vt+1}, s[{sC}:{sC+1}]
    s_mul_i32 s{s_t}, s{s_head}, {20*16}
    s_add_u32 s{s_t}, s{s_t}, {VF}
    v_lshlrev_b32 v{vt}, 4, v{vt}
    v_mul_u32_u24 v{vt+2}, 10240, v{vt+2}
    v_add_u32 v{vt}, v{vt}, v{vt+2}
    v_add_u32 v{vV0}, s{s_t}, v{vt}
    v_add_u32 v{vV1}, 20480, v{vV0}
    s_mov_b32 s{s_t+2}, 0x3f803f80
    s_mov_b32 s{s_t+3}, 0x3f803f80""")
    assert (s_t+2) % 2 == 0
    for j in range(16):
        A(f"v_pk_mov_b32 v[{VB+2*j}:{VB+2*j+1}], s[{s_t+2}:{s_t+3}], s[{s_t+2}:{s_t+3}] op_sel:[0,1]")
    def loadV(i, vmx):
        b = VB + 8*(i & 3)
        A(f"s_mov_b64 exec, s[{sVM}:{sVM+1}]")
        A(f"buffer_load_dwordx4 v[{b}:{b+3}], v{vV0}, s[{sWS}:{sWS+3}], s{s_kb+i} offen")
        A(f"buffer_load_dwordx4 v[{b+4}:{b+7}], v{vV1}, s[{sWS}:{sWS+3}], s{s_kb+i} offen")
        A(f"s_mov_b64 exec, -1")
        vmx.issue(f"V{i}"); vmx.issue(f"V{i}")
    for i in (9, 8, 7, 6): loadV(i, vm)
    if pre_issue: pre_issue(vm)
    A(f"""v_and_b32 v{vt}, 31, v{l}
    v_lshrrev_b32 v{vt+1}, 5, v{l}
    v_lshlrev_b32 v{vt+1}, 2, v{vt+1}
    v_sub_u32 v{vt}, v{vt}, v{vt+1}
    v_mov_b32 v{vt+1}, {hx(f2u(NEGBIG))}""")
    for half in range(2):
        for r in range(8):
            rr = half*8 + r; c = 8*(rr >> 2) + (rr & 3)
            A(f"v_cmp_le_i32 s[{sC+2*r}:{sC+2*r+1}], {c}, v{vt}")
        for r in range(8):
            rr = half*8 + r
            A(f"v_cndmask_b32_e64 v{M8+rr}, v{vt+1}, 0, s[{sC+2*r}:{sC+2*r+1}]")
            A(f"v_cndmask_b32_e64 v{M0+rr}, 0, v{vt+1}, s[{sC+2*r}:{sC+2*r+1}]")
    ST()
    vm.wait(A, "Q")
    for q in range(2):
        for j in range(2):
            A(f"v_cndmask_b32_e64 v{QH1+2*q+j}, 0, v{QH0+2*q+j}, s[{sHH}:{sHH+1}]")
            A(f"v_cndmask_b32_e64 v{QH0+2*q+j}, v{QH0+2*q+j}, 0, s[{sHH}:{sHH+1}]")
    units = [(9,1)] + [(i,q) for i in range(8,0,-1) for q in (0,1)] + [(0,0)]
    def mask_of(i, q):
        if (q == 0 and i == 8) or (q == 1 and i == 9): return M8
        if (q == 0 and i == 0) or (q == 1 and i == 1): return M0
        return None
    def s_main(i, q, dst, csrc):
        A(f"v_mfma_f32_32x32x16_bf16 v[{dst}:{dst+15}], v[{KM+4*i}:{KM+4*i+3}], v[{QM+4*q}:{QM+4*q+3}], {csrc}")
    def s_hi(i, q, dst):
        qh = (QH1 if (i & 1) else QH0) + 2*q
        p = i >> 1
        A(f"v_mfma_f32_32x32x8_bf16 v[{dst}:{dst+15}], v[{KH+2*p}:{KH+2*p+1}], v[{qh}:{qh+1}], v[{dst}:{dst+15}]")
    B1 = [S_+16, S_, O_, O_+16]
    seen = [False, False]
    def maxops(n):
        i, q = units[n]; b = B1[n % 4]; m = mq + 2*q
        out = []
        if not seen[q]:
            out.append(f"v_max3_f32 v{m}, v{b}, v{b+1}, v{b+2}")
            for k in range(6): out.append(f"v_max3_f32 v{m}, v{m}, v{b+3+2*k}, v{b+4+2*k}")
            out.append(f"v_max_f32 v{m}, v{m}, v{b+15}")
            seen[q] = True
        else:
            for k in range(8): out.append(f"v_max3_f32 v{m}, v{m}, v{b+2*k}, v{b+2*k+1}")
        return out
    def p1_issue(n, fill):
        i, q = units[n]; b = B1[n % 4]
        vm.wait(A, f"KH{i>>1}"); vm.wait(A, f"K{i}")
        mk = mask_of(i, q)
        s_main(i, q, b, f"v[{mk}:{mk+15}]" if mk else "0")
        for x in fill[:4]: A(x)
        s_hi(i, q, b)
        for x in fill[4:]: A(x)
    L1 = f"L_{tagp}_p1exit"; L1d = f"L_{tagp}_p1done"
    p1_issue(0, []); p1_issue(1, [])
    for n in range(2, len(units)):
        i, q = units[n]
        if q == 0 and (i & 1) and i < 8:
            A(f"s_cmp_gt_u32 s{s_imin}, {i}")
            A(f"s_cbranch_scc1 {L1}")
        p1_issue(n, maxops(n-2))
    for x in maxops(len(units)-2): A(x)
    for x in maxops(len(units)-1): A(x)
    A(f"s_branch {L1d}")
    A.label(L1)
    for (b, m) in ((B1[1], mq), (B1[2], mq+2)):
        for k in range(8): A(f"v_max3_f32 v{m}, v{m}, v{b+2*k}, v{b+2*k+1}")
    A.label(L1d)
    ST()
    for q in range(2):
        m = mq + 2*q
        A(f"v_mov_b32 v{m+1}, v{m}")
    for q in range(2):
        m = mq + 2*q
        A(f"v_permlane32_swap_b32 v{m}, v{m+1}")
    for q in range(2):
        m = mq + 2*q
        A(f"v_max_f32 v{m}, v{m}, v{m+1}")
    for q in (1, 0):
        m = mq + 2*q
        for j in range(8):
            A(f"v_pk_add_f32 v[{CN+16*q+2*j}:{CN+16*q+2*j+1}], v[{m}:{m+1}], 0 op_sel_hi:[0,0] neg_lo:[1,0] neg_hi:[1,0]")
    def sbuf(q): return S_ + 16*q
    def pre_mask(n):
        i, q = units[n]; mk = mask_of(i, q); b = sbuf(q)
        if mk:
            for j in range(8):
                A(f"v_pk_add_f32 v[{b+2*j}:{b+2*j+1}], v[{mk+2*j}:{mk+2*j+1}], v[{CN+16*q+2*j}:{CN+16*q+2*j+1}]")
            return f"v[{b}:{b+15}]"
        return f"v[{CN+16*q}:{CN+16*q+15}]"
    first_pv = [True, True]
    def pv(n, s, vmx, fp, noload=False):
        i, q = units[n]; o = O_ + 16*q; vb = VB + 8*(i & 3) + 4*s; p = P_ + 8*q + 4*s
        if s == 0: vmx.wait(A, f"V{i}")
        c = "0" if (fp[q] and s == 0) else f"v[{o}:{o+15}]"
        A(f"v_mfma_f32_32x32x16_bf16 v[{o}:{o+15}], v[{vb}:{vb+3}], v[{p}:{p+3}], {c}")
        if s == 1:
            fp[q] = False
            last_use = (q == 1) or (i == 0)
            if last_use and i - 4 >= 0 and not noload: loadV(i - 4, vmx)
    def block(n, do_next, vmx, fp, noload=False):
        i, q = units[n]; b = sbuf(q); p = P_ + 8*q
        ex = [f"v_exp_f32 v{b+r}, v{b+r}" for r in range(16)]
        if do_next:
            i2, q2 = units[n+1]
            c = pre_mask(n+1)
            s_main(i2, q2, sbuf(q2), c)
        for x in ex[0:4]: A(x)
        if do_next: s_hi(i2, q2, sbuf(q2))
        for x in ex[4:8]: A(x)
        if n >= 1: pv(n-1, 0, vmx, fp, noload)
        for x in ex[8:12]: A(x)
        if n >= 1: pv(n-1, 1, vmx, fp, noload)
        for x in ex[12:16]: A(x)
        for j in range(8): A(f"v_cvt_pk_bf16_f32 v{p+j}, v{b+2*j}, v{b+2*j+1}")
    i0, q0 = units[0]
    c = pre_mask(0); s_main(i0, q0, sbuf(q0), c); s_hi(i0, q0, sbuf(q0))
    exits = []
    for n in range(len(units)):
        i, q = units[n]
        last = (n == len(units)-1)
        if not last:
            i2, q2 = units[n+1]
            if q2 == 0 and (i2 & 1) and i2 < 8:
                lab = f"L_{tagp}_p2exit{i2}"
                A(f"s_cmp_gt_u32 s{s_imin}, {i2}")
                A(f"s_cbranch_scc1 {lab}")
                exits.append((lab, n, vm.copy(), list(first_pv)))
        block(n, not last, vm, first_pv)
    Lfin = f"L_{tagp}_fin"
    n = len(units)-1
    pv(n, 0, vm, first_pv); pv(n, 1, vm, first_pv)
    A(f"s_branch {Lfin}")
    for (lab, n, vmx, fp) in exits:
        A.label(lab)
        block(n, False, vmx, fp, True)
        pv(n, 0, vmx, fp, True); pv(n, 1, vmx, fp, True)
        A("s_waitcnt vmcnt(0)")
        A(f"s_branch {Lfin}")
    A.label(Lfin)
    ST()
    vt = S_
    A(f"""v_lshrrev_b32 v{vt}, 5, v{l}
    v_add_u32 v{vt}, s{s_om}, v{vt}
    v_lshrrev_b32 v{vt+1}, 2, v{vt}
    v_and_b32 v{vt}, 3, v{vt}
    v_lshlrev_b32 v{vt}, 8, v{vt}
    v_lshl_add_u32 v{vt}, v{vt+1}, 12, v{vt}
    v_bfe_u32 v{vt+1}, v{l}, 4, 1
    v_and_b32 v{vt+2}, 15, v{l}
    v_lshlrev_b32 v{vt+2}, 4, v{vt+2}
    v_lshl_add_u32 v{vt+2}, v{vt+1}, 10, v{vt+2}
    v_add_u32 v{vt}, v{vt}, v{vt+2}
    s_lshr_b32 s{s_t}, s{s_oh}, 2
    s_lshl_b32 s{s_t}, s{s_t}, 12
    s_and_b32 s{s_t+1}, s{s_oh}, 3
    s_lshl_b32 s{s_t+1}, s{s_t+1}, 8
    s_add_u32 s{s_t}, s{s_t}, s{s_t+1}
    s_lshl_b32 s{s_t+1}, s{s_par}, 3
    s_add_u32 s{s_t}, s{s_t}, s{s_t+1}
    v_add_u32 v{vt+1}, s{s_t}, v{vt+2}
    s_mul_i32 s{s_t}, s{s_rb}, {68*4096}
    s_add_u32 s{s_t}, s{s_t}, {AF + 48*4096}
    s_add_u32 s{s_t+1}, s{s_t}, 2048""")
    for q in range(2):
        o = O_ + 16*q; d = mq + 2*q; p = P_ + 8*q
        A(f"v_mov_b32 v{d}, v{o+8}")
        A(f"v_mov_b32 v{d+1}, v{o+8}")
    for q in range(2):
        d = mq + 2*q
        A(f"v_permlane32_swap_b32 v{d}, v{d+1}")
    for q in range(2):
        d = mq + 2*q
        A(f"v_rcp_f32 v{d+1}, v{d+1}")
    for q in range(2):
        o = O_ + 16*q; d = mq + 2*q; p = P_ + 8*q
        for j in range(6):
            A(f"v_pk_mul_f32 v[{o+2*j}:{o+2*j+1}], v[{o+2*j}:{o+2*j+1}], v[{d}:{d+1}] op_sel:[0,1] op_sel_hi:[1,1]")
        for j in range(6):
            A(f"v_cvt_pk_bf16_f32 v{p+j}, v{o+2*j}, v{o+2*j+1}")
        A(f"v_permlane32_swap_b32 v{p}, v{p+2}")
        A(f"v_permlane32_swap_b32 v{p+1}, v{p+3}")
        A(f"buffer_store_dwordx4 v[{p}:{p+3}], v{vt}, s[{sWS}:{sWS+3}], s{s_t+q} offen{store_mods}")
        A(f"s_mov_b64 exec, s[{sLO}:{sLO+1}]")
        A(f"buffer_store_dwordx2 v[{p+4}:{p+5}], v{vt+1}, s[{sWS}:{sWS+3}], s{s_t+q} offen{store_mods}")
        A(f"s_mov_b64 exec, -1")

def gen_att(A, name="att_kernel", prof=False, **kw):
    kernel_header(A, name)
    V = Regs(1, 256, "v"); Sg = Regs(8, 100, "s")
    sWS = Sg.alloc(4,4); pWS = Sg.alloc(2,2)
    s_w = Sg.alloc(); s_rb = Sg.alloc(); s_head = Sg.alloc(); s_x = Sg.alloc()
    ST = Stamp(A, prof, Sg.alloc(10,2), 8)
    v_lane = V.alloc()
    A(f"s_cmp_ge_u32 s2, 256")
    A(f"s_cbranch_scc1 L_att_done")
    A(f"s_load_dwordx2 s[{pWS}:{pWS+1}], s[0:1], {KA['ws']}")
    ST()
    A(f"""v_lshrrev_b32 v{v_lane}, 6, v0
    v_readfirstlane_b32 s{s_w}, v{v_lane}
    v_and_b32 v{v_lane}, 63, v0
    s_and_b32 s{s_rb}, s2, 7
    s_lshl_b32 s{s_rb}, s{s_rb}, 2
    s_lshr_b32 s{s_x}, s2, 3
    s_and_b32 s{s_x}, s{s_x}, 3
    s_add_u32 s{s_rb}, s{s_rb}, s{s_x}
    s_lshr_b32 s{s_head}, s2, 5
    s_lshl_b32 s{s_head}, s{s_head}, 2
    s_add_u32 s{s_head}, s{s_head}, s{s_w}
    s_waitcnt lgkmcnt(0)""")
    srd(A, sWS, pWS, WS_REC)
    att_body(A, V, Sg, sWS, s_rb, s_head, v_lane, ST)
    if prof:
        ST()
        A(f"s_lshl_b32 s{s_x}, s2, 3\ns_add_u32 s{s_x}, s{s_x}, s{s_w}")
        ST.dump(sWS, s_x, 2, 1)
    A.label("L_att_done")
    A("s_endpgm")
    return V.hi
```

```python
from asmlib import *
S=2048; D=640; F=1536; NH=32; DH=20
QF=0; KF=2621440; VF=5242880; AF=7864320; AF_SZ=32*68*4096; WF=AF+AF_SZ; WF_SZ=8*68*5120
WS_USED = WF+WF_SZ
STAMP_OFF = WS_USED
WS_REC = WS_USED + (1<<20)
LOG2E=1.4426950408889634
QSCALE = LOG2E * (DH ** -0.5)
import struct
def f2u(x): return struct.unpack("<I", struct.pack("<f", x))[0]
def hx(x): return f"0x{x & 0xffffffff:08x}"

KA = dict(x=0, wqkv=8, wo=16, bx=24, w1=32, b1=40, w2=48, b2=56, out=64, dbg=72, ws=80)

def srd(A, s, base_s, nbytes):
    A(f"s_mov_b32 s{s}, s{base_s}")
    A(f"s_and_b32 s{s+1}, s{base_s+1}, 0xffff")
    A(f"s_mov_b32 s{s+2}, {nbytes}")
    A(f"s_mov_b32 s{s+3}, 0x20000")

def kernel_header(A, name):
    A(".text")
    A(f".globl {name}")
    A(".p2align 8")
    A(f".type {name},@function")
    A.label(name)

def kernel_desc(name, nvgpr, nsgpr=96):
    acc = (nvgpr+3)//4*4
    return f""".section .rodata,"a"
.p2align 6
.amdhsa_kernel {name}
  .amdhsa_next_free_vgpr {nvgpr}
  .amdhsa_next_free_sgpr {nsgpr}
  .amdhsa_accum_offset {acc}
  .amdhsa_group_segment_fixed_size 0
  .amdhsa_kernarg_size 88
  .amdhsa_user_sgpr_count 2
  .amdhsa_user_sgpr_kernarg_segment_ptr 1
  .amdhsa_system_sgpr_workgroup_id_x 1
  .amdhsa_float_denorm_mode_32 3
  .amdhsa_float_denorm_mode_16_64 3
.end_amdhsa_kernel
"""

class Stamp:
    def __init__(self, A, enabled, sbase, n=8):
        self.A=A; self.en=enabled; self.sb=sbase; self.i=0; self.n=n
    def __call__(self):
        if not self.en: return
        assert self.i < self.n
        self.A(f"s_memtime s[{self.sb+self.n+ (self.n&1)}:{self.sb+self.n+(self.n&1)+1}]")
        self.A("s_waitcnt lgkmcnt(0)")
        self.A(f"s_mov_b32 s{self.sb+self.i}, s{self.sb+self.n+(self.n&1)}")
        self.i += 1
    def dump(self, srd_ws, s_wgwave, vtmp, kernel_slot):
        if not self.en: return
        A=self.A
        A(f"s_lshl_b32 s{self.sb+self.n+(self.n&1)}, s{s_wgwave}, 5")
        A(f"s_add_u32 s{self.sb+self.n+(self.n&1)}, s{self.sb+self.n+(self.n&1)}, {STAMP_OFF + kernel_slot*65536}")
        A(f"v_mov_b32 v{vtmp}, 0")
        for j in range(self.i):
            A(f"v_mov_b32 v{vtmp+1}, s{self.sb+j}")
            A(f"buffer_store_dword v{vtmp+1}, v{vtmp}, s[{srd_ws}:{srd_ws+3}], s{self.sb+self.n+(self.n&1)} offen offset:{j*4}")
```

```python
from common import *

XR=0; WQR=49152; WHR=98304; RLR=135168
STR=RLR+12288
CSR=STR+1024
B1R=CSR+1024
RWR=B1R+512
G1_LDS=RWR+1024
NCH=10

def gen_g1(A, name="g1_kernel", prof=False, standalone=True, **kw):
    kernel_header(A, name)
    V = Regs(1, 256, "v"); Sg = Regs(8, 96, "s")
    sX=Sg.alloc(4,4); sWQ=Sg.alloc(4,4); sWH=Sg.alloc(4,4); sWS=Sg.alloc(4,4); sRL=Sg.alloc(4,4); sB1=Sg.alloc(4,4)
    pX=Sg.alloc(2,2); pWQ=Sg.alloc(2,2); pWO=Sg.alloc(2,2); pW1=Sg.alloc(2,2); pB1=Sg.alloc(2,2); pW2=Sg.alloc(2,2); pWS=Sg.alloc(2,2)
    s_w=Sg.alloc(); s_rt=Sg.alloc(); s_ch=Sg.alloc(); s_rb=Sg.alloc(); s_g=Sg.alloc(); s_gl=Sg.alloc(); s_ty=Sg.alloc()
    s_ox=Sg.alloc(); s_oq=Sg.alloc(); s_oh=Sg.alloc()
    s_mx=Sg.alloc(); s_mq=Sg.alloc(); s_mh=Sg.alloc()
    s_t0=Sg.alloc(); s_t1=Sg.alloc(); s_t2=Sg.alloc(); s_t3=Sg.alloc()
    s_ones=Sg.alloc(); s_u=Sg.alloc(); s_tile=Sg.alloc(4)
    s_ex=Sg.alloc(2,2)
    ST = Stamp(A, prof, Sg.alloc(10,2), 8)
    v_lane=V.alloc();
    vX0=V.alloc(); vX1=V.alloc(); vQ0=V.alloc(); vQ1=V.alloc(); vH0=V.alloc(); vH1=V.alloc()
    aX=V.alloc(4); aW=V.alloc(4)
    v_sum=V.alloc(); v_cs=V.alloc()
    vt=V.alloc(8,2)
    XF=V.alloc(8,4); WFr=V.alloc(32,4); ACC=V.alloc(64,4)
    ep=V.alloc(64,4)
    A(f"s_cmp_ge_u32 s2, 256")
    A(f"s_cbranch_scc1 L_g1_done")
    A(f"s_load_dwordx4 s[{pX}:{pX+3}], s[0:1], {KA['x']}") if pX % 4 == 0 and pWQ == pX+2 else None
    assert pX % 4 == 0 and pWQ == pX+2
    A(f"s_load_dwordx2 s[{pWO}:{pWO+1}], s[0:1], {KA['wo']}")
    A(f"s_load_dwordx2 s[{pW1}:{pW1+1}], s[0:1], {KA['w1']}")
    A(f"s_load_dwordx2 s[{pB1}:{pB1+1}], s[0:1], {KA['b1']}")
    A(f"s_load_dwordx2 s[{pW2}:{pW2+1}], s[0:1], {KA['w2']}")
    A(f"s_load_dwordx2 s[{pWS}:{pWS+1}], s[0:1], {KA['ws']}")
    ST()
    A(f"v_lshrrev_b32 v{vt}, 6, v0")
    A(f"v_and_b32 v{v_lane}, 63, v0")
    A(f"v_readfirstlane_b32 s{s_w}, v{vt}")
    A(f"""s_and_b32 s{s_t0}, s2, 7
    s_lshr_b32 s{s_t1}, s2, 3
    s_and_b32 s{s_rb}, s{s_t0}, 1
    s_lshl_b32 s{s_rb}, s{s_rb}, 3
    s_and_b32 s{s_t2}, s{s_t1}, 7
    s_add_u32 s{s_rb}, s{s_rb}, s{s_t2}
    s_lshr_b32 s{s_g}, s{s_t0}, 1
    s_lshl_b32 s{s_g}, s{s_g}, 2
    s_lshr_b32 s{s_t2}, s{s_t1}, 3
    s_add_u32 s{s_g}, s{s_g}, s{s_t2}
    s_and_b32 s{s_rt}, s{s_w}, 3
    s_lshr_b32 s{s_ch}, s{s_w}, 2""")
    A(f"""s_mul_i32 s{s_ty}, s{s_g}, 52
    s_lshr_b32 s{s_ty}, s{s_ty}, 8
    s_mul_i32 s{s_t2}, s{s_ty}, 5
    s_sub_u32 s{s_gl}, s{s_g}, s{s_t2}""")
    l=v_lane; t=vt
    A(f"""v_lshrrev_b32 v{t}, 3, v{l}
    v_mul_u32_u24 v{t}, 1280, v{t}
    v_lshrrev_b32 v{t+1}, 4, v{l}
    v_and_b32 v{t+2}, 7, v{l}
    v_xor_b32 v{t+2}, v{t+2}, v{t+1}
    v_lshl_add_u32 v{vX0}, v{t+2}, 4, v{t}
    v_xor_b32 v{t+2}, 4, v{t+2}
    v_lshl_add_u32 v{vX1}, v{t+2}, 4, v{t}
    v_add_u32 v{vX1}, {8*1280}, v{vX1}""")
    A(f"""v_mul_u32_u24 v{t}, 3840, v{t+1}
    v_and_b32 v{t+2}, 15, v{l}
    v_lshlrev_b32 v{t+3}, 2, v{t+1}
    v_xor_b32 v{t+2}, v{t+2}, v{t+3}
    v_lshl_add_u32 v{vQ0}, v{t+2}, 4, v{t}
    v_add_u32 v{vQ1}, {4*3840}, v{vQ0}""")
    A(f"""s_lshl_b32 s{s_t0}, s{s_rt}, 1
    s_add_u32 s{s_t0}, s{s_t0}, 4
    s_cmp_eq_u32 s{s_ch}, 0
    s_cselect_b32 s{s_t0}, s{s_rt}, s{s_t0}
    s_lshl_b32 s{s_t1}, s{s_t0}, 6""")
    for (dst, add) in ((vH0, 0), (vH1, 64)):
        A(f"""v_add_u32 v{t}, s{s_t1}, v{l}
        v_add_u32 v{t}, {add}, v{t}
        v_mul_u32_u24 v{t+1}, 43691, v{t}
        v_lshrrev_b32 v{t+1}, 19, v{t+1}
        v_mul_u32_u24 v{t+2}, 12, v{t+1}
        v_sub_u32 v{t+2}, v{t}, v{t+2}
        v_mul_u32_u24 v{t+1}, 3072, v{t+1}
        v_lshl_add_u32 v{dst}, v{t+2}, 4, v{t+1}""")
    A(f"""s_lshl_b32 s{s_mx}, s{s_w}, 11
    s_add_u32 s{s_mq}, s{s_mx}, {WQR}
    s_lshl_b32 s{s_mh}, s{s_t0}, 10
    s_add_u32 s{s_mh}, s{s_mh}, {WHR}""")
    A(f"""s_lshl_b32 s{s_ox}, s{s_rb}, 7
    s_lshl_b32 s{s_t1}, s{s_w}, 4
    s_add_u32 s{s_ox}, s{s_ox}, s{s_t1}
    s_mul_i32 s{s_ox}, s{s_ox}, 1280
    s_lshl_b32 s{s_oq}, s{s_w}, 3
    s_mul_i32 s{s_oq}, s{s_oq}, 3840
    s_lshl_b32 s{s_t1}, s{s_g}, 8
    s_add_u32 s{s_oq}, s{s_oq}, s{s_t1}
    s_mul_i32 s{s_oh}, s{s_g}, 192""")
    A("s_waitcnt lgkmcnt(0)")
    srd(A, sX, pX, S*D*2); srd(A, sWQ, pWQ, 640*3840); srd(A, sWH, pW1, 640*3072); srd(A, sWS, pWS, WS_REC)
    srd(A, sB1, pB1, 3072)

    def dma_chunk(stage, ch):
        n = 0
        for (vo, sd, so, sm, add, ssz) in ((vX0,sX,s_ox,s_mx,0,16384),(vX1,sX,s_ox,s_mx,1024,16384),
                                      (vQ0,sWQ,s_oq,s_mq,0,16384),(vQ1,sWQ,s_oq,s_mq,1024,16384),
                                      (vH0,sWH,s_oh,s_mh,0,12288)) + (((vH1,sWH,s_oh,s_mh,1024,12288),) if ch==1 else ()):
            A(f"s_add_u32 m0, s{sm}, {stage*ssz+add}")
            A(f"buffer_load_dwordx4 v{vo}, s[{sd}:{sd+3}], s{so} offen lds")
            n += 1
        A(f"s_add_u32 s{s_ox}, s{s_ox}, 128")
        A(f"s_add_u32 s{s_oq}, s{s_oq}, {64*3840}")
        A(f"s_add_u32 s{s_oh}, s{s_oh}, {64*3072}")
        return n

    A(f"s_cmp_eq_u32 s{s_ch}, 0")
    A(f"s_cbranch_scc0 L_g1_ch1")

    def rl_setup_and_issue(s_unit):
        A(f"""s_lshr_b32 s{s_t0}, s{s_unit}, 2
        s_cmp_lt_u32 s{s_t0}, 48
        s_cselect_b32 s{sRL}, s{pW2}, s{pWO}
        s_cselect_b32 s{sRL+1}, s{pW2+1}, s{pWO+1}
        s_mov_b32 s{sRL+2}, {640*1280}
        s_cselect_b32 s{sRL+2}, {1536*1280}, s{sRL+2}
        s_cselect_b32 s{s_t1}, 0, 48
        s_and_b32 s{sRL+1}, s{sRL+1}, 0xffff
        s_mov_b32 s{sRL+3}, 0x20000
        s_sub_u32 s{s_t0}, s{s_t0}, s{s_t1}
        s_mul_i32 s{s_t0}, s{s_t0}, {32*1280}
        s_and_b32 s{s_t1}, s{s_unit}, 3
        s_mul_i32 s{s_t1}, s{s_t1}, 320
        s_add_u32 s{s_t0}, s{s_t0}, s{s_t1}
        s_lshl_b32 s{s_t1}, s{s_rt}, 6
        s_lshl_b32 s{s_t2}, s{s_rt}, 10
        s_add_u32 s{s_t2}, s{s_t2}, {RLR}""")
        for j in range(3):
            A(f"""v_add_u32 v{t}, s{s_t1}, v{l}
            v_add_u32 v{t}, {256*j}, v{t}
            v_mul_u32_u24 v{t+1}, 52429, v{t}
            v_lshrrev_b32 v{t+1}, 20, v{t+1}
            v_mul_u32_u24 v{t+2}, 20, v{t+1}
            v_sub_u32 v{t+2}, v{t}, v{t+2}
            v_mul_u32_u24 v{t+1}, 1280, v{t+1}
            v_lshl_add_u32 v{t+4+j}, v{t+2}, 4, v{t+1}""")
        for j in range(3):
            A(f"s_add_u32 m0, s{s_t2}, {4096*j}")
            A(f"buffer_load_dwordx4 v{t+4+j}, s[{sRL}:{sRL+3}], s{s_t0} offen lds")

    def rl_process(s_unit, tag):
        A(f"""s_lshr_b32 s{s_t0}, s{s_unit}, 2
        s_cmp_lt_u32 s{s_t0}, 48
        s_cselect_b32 s{s_t1}, 4, 8
        s_mov_b32 s{s_t2}, 1280
        s_cselect_b32 s{s_t2}, 2560, s{s_t2}
        v_lshrrev_b32 v{t}, 5, v{l}
        v_lshlrev_b32 v{t}, 4, v{t}
        v_bfe_u32 v{t+1}, v{l}, 4, 1
        v_mul_u32_u24 v{t+1}, s{s_t1}, v{t+1}
        v_add_u32 v{t}, v{t}, v{t+1}
        v_bfe_u32 v{t+1}, v{l}, 2, 2
        v_add_u32 v{t}, v{t}, v{t+1}
        v_mul_u32_u24 v{t}, 320, v{t}
        v_and_b32 v{t+1}, 3, v{l}
        v_lshl_add_u32 v{t}, v{t+1}, 3, v{t}
        s_lshl_b32 s{s_t1}, s{s_rt}, 5
        s_add_u32 s{s_t1}, s{s_t1}, {RLR}
        v_add_u32 v{t}, s{s_t1}, v{t}
        v_add_u32 v{t+1}, s{s_t2}, v{t}
        v_lshlrev_b32 v{t+2}, 4, v{l}""")
        for j in range(3):
            if j == 2:
                A(f"s_cmp_ge_u32 s{s_rt}, 2")
                A(f"s_cbranch_scc1 L_rl_skip_{tag}")
            A(f"ds_read_b64_tr_b16 v[{ep+4*j}:{ep+4*j+1}], v{t} offset:{128*j}")
            A(f"ds_read_b64_tr_b16 v[{ep+4*j+2}:{ep+4*j+3}], v{t+1} offset:{128*j}")
            A(f"""s_add_u32 s{s_t1}, s{s_rt}, {4*j}
            s_cmp_ge_u32 s{s_t1}, 5
            s_cselect_b32 s{s_t2}, 1, 0
            s_cselect_b32 s{s_t3}, 5, 0
            s_sub_u32 s{s_t1}, s{s_t1}, s{s_t3}
            s_and_b32 s{s_t3}, s{s_unit}, 3
            s_lshl_b32 s{s_t3}, s{s_t3}, 1
            s_add_u32 s{s_t3}, s{s_t3}, s{s_t2}
            s_mul_i32 s{s_t3}, s{s_t3}, 68
            s_add_u32 s{s_t3}, s{s_t3}, s{s_t0}
            s_mul_i32 s{s_t3}, s{s_t3}, 5
            s_add_u32 s{s_t3}, s{s_t3}, s{s_t1}
            s_lshl_b32 s{s_t3}, s{s_t3}, 10
            s_add_u32 s{s_t3}, s{s_t3}, {WF}
            s_waitcnt lgkmcnt(0)
            buffer_store_dwordx4 v[{ep+4*j}:{ep+4*j+3}], v{t+2}, s[{sWS}:{sWS+3}], s{s_t3} offen""")
        A.label(f"L_rl_skip_{tag}")

    def frag_addr(ch):
        A(f"""v_and_b32 v{t}, 31, v{l}
        v_lshrrev_b32 v{t+1}, 5, v{l}
        v_bfe_u32 v{t+2}, v{l}, 1, 3
        v_xor_b32 v{t+1}, v{t+1}, v{t+2}
        v_lshlrev_b32 v{t+1}, 4, v{t+1}
        v_lshl_add_u32 v{t+1}, v{t}, 7, v{t+1}
        s_lshl_b32 s{s_t0}, s{s_rt}, 12
        v_add_u32 v{aX}, s{s_t0}, v{t+1}""")
        for ks in range(1,4):
            A(f"v_xor_b32 v{aX+ks}, {ks<<5}, v{aX}")
        A(f"""v_lshrrev_b32 v{t}, 5, v{l}
        v_lshlrev_b32 v{t}, 3, v{t}
        v_bfe_u32 v{t+1}, v{l}, 2, 2
        v_add_u32 v{t}, v{t}, v{t+1}
        v_bfe_u32 v{t+2}, v{l}, 4, 1
        v_lshlrev_b32 v{t+2}, 5, v{t+2}
        v_and_b32 v{t+3}, 3, v{l}
        v_lshl_add_u32 v{t+2}, v{t+3}, 3, v{t+2}""")
        if ch == 0:
            A(f"""v_lshl_add_u32 v{t+2}, v{t}, 8, v{t+2}
            v_add_u32 v{t+2}, {WQR}, v{t+2}""")
            for s in range(4):
                A(f"""s_add_u32 s{s_tile+s}, s{s_rt}, {s}
                s_and_b32 s{s_tile+s}, s{s_tile+s}, 3
                v_xor_b32 v{t+3}, s{s_tile+s}, v{t+1}
                v_lshl_add_u32 v{aW+s}, v{t+3}, 6, v{t+2}""")
        else:
            A(f"""v_mul_u32_u24 v{t}, 192, v{t}
            v_add_u32 v{t+2}, v{t}, v{t+2}
            v_add_u32 v{t+2}, {WHR}, v{t+2}""")
            for s in range(3):
                A(f"""s_add_u32 s{s_tile+s}, s{s_rt}, {s}
                s_cmp_ge_u32 s{s_tile+s}, 3
                s_cselect_b32 s{s_t0}, 3, 0
                s_sub_u32 s{s_tile+s}, s{s_tile+s}, s{s_t0}
                s_cmp_ge_u32 s{s_tile+s}, 3
                s_cselect_b32 s{s_t0}, 3, 0
                s_sub_u32 s{s_tile+s}, s{s_tile+s}, s{s_t0}
                s_lshl_b32 s{s_t0}, s{s_tile+s}, 6
                v_add_u32 v{aW+s}, s{s_t0}, v{t+2}""")

    def reads(ch, c, ks, buf):
        st = c % 3; nt = 4 if ch == 0 else 3
        r = [f"ds_read_b128 v[{XF+4*buf}:{XF+4*buf+3}], v{aX+ks} offset:{st*16384}"]
        for s in range(nt):
            w = WFr + 16*buf + 4*s
            for rd in range(2):
                off = st*16384 + (16*ks+4*rd)*256 if ch == 0 else st*12288 + (16*ks+4*rd)*192
                r.append(f"ds_read_b64_tr_b16 v[{w+2*rd}:{w+2*rd+1}], v{aW+s} offset:{off}")
        return r

    def mainloop(ch, vtype, nrl):
        nt = 4 if ch == 0 else 3
        n = 5 if ch == 0 else 6
        A(f"s_waitcnt vmcnt({2*n+nrl})")
        A("s_barrier")
        for x in reads(ch, 0, 0, 0): A(x)
        ST()
        for c in range(NCH):
            for ks in range(4):
                buf = ks & 1
                xf = XF+4*buf
                def mf(s):
                    w = WFr+16*buf+4*s; acc = ACC+16*s
                    cc = f"v[{acc}:{acc+15}]" if not (c == 0 and ks == 0) else "0"
                    if vtype: A(f"v_mfma_f32_32x32x16_bf16 v[{acc}:{acc+15}], v[{xf}:{xf+3}], v[{w}:{w+3}], {cc}")
                    else:     A(f"v_mfma_f32_32x32x16_bf16 v[{acc}:{acc+15}], v[{w}:{w+3}], v[{xf}:{xf+3}], {cc}")
                def stats():
                    w = WFr+16*buf
                    out = []
                    for j in range(4):
                        if ch == 0: out.append(f"v_dot2c_f32_bf16 v{v_sum}, s{s_ones}, v{xf+j}")
                        else:       out.append(f"v_dot2c_f32_bf16 v{v_sum}, v{xf+j}, v{xf+j}")
                        out.append(f"v_dot2c_f32_bf16 v{v_cs}, s{s_ones}, v{w+j}")
                    return out
                if ks < 3:
                    nxt = reads(ch, c, ks+1, buf^1)
                    A("s_waitcnt lgkmcnt(0)")
                    st_ = stats()
                    mf(0)
                    for x in nxt[:5]: A(x)
                    mf(1)
                    for x in nxt[5:]: A(x)
                    for s in range(2, nt):
                        mf(s)
                        for x in st_[(s-2)*4:(s-1)*4 if s < nt-1 else 8]: A(x)
                else:
                    A("s_waitcnt lgkmcnt(0)")
                    if c < NCH-1:
                        extra = nrl if c <= 1 else 0
                        infl = n if c+2 < NCH else 0
                        A(f"s_waitcnt vmcnt({infl+extra})")
                        A("s_barrier")
                    st_ = stats()
                    mf(0)
                    if c+3 < NCH: dma_chunk(c % 3, ch)
                    nxt = reads(ch, c+1, 0, buf^1) if c < NCH-1 else []
                    for x in nxt[:5]: A(x)
                    mf(1)
                    for x in nxt[5:]: A(x)
                    for s in range(2, nt):
                        mf(s)
                        for x in st_[(s-2)*4:(s-1)*4 if s < nt-1 else 8]: A(x)

    def finalize_stats(ch):
        a=vt; b=vt+1
        A(f"""v_mov_b32 v{a}, v{v_sum}
        v_mov_b32 v{b}, v{v_cs}
        v_permlane32_swap_b32 v{v_sum}, v{a}
        v_permlane32_swap_b32 v{v_cs}, v{b}
        v_add_f32 v{v_sum}, v{v_sum}, v{a}
        v_add_f32 v{v_cs}, v{v_cs}, v{b}
        v_and_b32 v{a}, 31, v{l}
        v_lshlrev_b32 v{a}, 2, v{a}
        s_lshl_b32 s{s_t0}, s{s_rt}, 7
        s_add_u32 s{s_t0}, s{s_t0}, {STR + ch*512}
        v_add_u32 v{b}, s{s_t0}, v{a}
        ds_write_b32 v{b}, v{v_sum}
        s_lshl_b32 s{s_t0}, s{s_tile}, 7
        s_add_u32 s{s_t0}, s{s_t0}, {CSR + ch*512}
        v_add_u32 v{b}, s{s_t0}, v{a}
        ds_write_b32 v{b}, v{v_cs}
        s_waitcnt lgkmcnt(0)
        s_barrier""")
        mean=vt+2; rs=vt+4
        A(f"""s_lshl_b32 s{s_t0}, s{s_rt}, 7
        s_add_u32 s{s_t0}, s{s_t0}, {STR}
        v_add_u32 v{b}, s{s_t0}, v{a}
        ds_read_b32 v{mean}, v{b}
        ds_read_b32 v{rs}, v{b} offset:512
        s_waitcnt lgkmcnt(0)
        v_mul_f32 v{mean}, {hx(f2u(1.0/640))}, v{mean}
        v_mul_f32 v{rs}, {hx(f2u(1.0/640))}, v{rs}
        v_fma_f32 v{rs}, -v{mean}, v{mean}, v{rs}
        v_max_f32 v{rs}, 0, v{rs}
        v_cvt_pk_bf16_f32 v{rs}, v{rs}, v{mean}
        v_and_b32 v{mean}, 0xffff0000, v{rs}
        v_lshlrev_b32 v{rs}, 16, v{rs}
        v_add_f32 v{rs}, {hx(f2u(1e-5))}, v{rs}
        v_cvt_pk_bf16_f32 v{rs}, v{rs}, v{rs}
        v_lshlrev_b32 v{rs}, 16, v{rs}
        v_sqrt_f32 v{rs}, v{rs}
        v_cvt_pk_bf16_f32 v{rs}, v{rs}, v{rs}
        v_lshlrev_b32 v{rs}, 16, v{rs}
        v_rcp_f32 v{rs}, v{rs}""")
        return mean, rs

    for stg in range(3): dma_chunk(stg, 0)
    A(f"s_mov_b32 s{s_u}, s2")
    rl_setup_and_issue(s_u)
    A(f"s_mov_b32 s{s_ones}, 0x3f803f80")
    A(f"v_mov_b32 v{v_sum}, 0\nv_mov_b32 v{v_cs}, 0")
    frag_addr(0)
    A(f"s_cmp_eq_u32 s{s_ty}, 2")
    A(f"s_cbranch_scc1 L_g1_vtype")
    mainloop(0, False, 3)
    ST()
    mean, rs = finalize_stats(0)
    A(f"s_cmp_eq_u32 s{s_ty}, 3")
    A(f"s_cbranch_scc1 L_g1_rl")
    A(f"""s_cmp_eq_u32 s{s_ty}, 0
    s_cselect_b32 s{s_t0}, {hx(f2u(QSCALE))}, {hx(f2u(1.0))}
    v_mul_f32 v{rs}, s{s_t0}, v{rs}
    v_lshrrev_b32 v{vt}, 5, v{l}
    v_lshlrev_b32 v{vt}, 4, v{vt}
    v_add_u32 v{vt}, {CSR}, v{vt}
    v_lshlrev_b32 v{vt+1}, 4, v{l}
    s_mul_i32 s{s_t1}, s{s_ty}, {KF}
    s_lshl_b32 s{s_t2}, s{s_rb}, 2
    s_add_u32 s{s_t2}, s{s_t2}, s{s_rt}
    s_mul_i32 s{s_t2}, s{s_t2}, 80
    s_lshl_b32 s{s_t3}, s{s_gl}, 4
    s_add_u32 s{s_t2}, s{s_t2}, s{s_t3}
    s_lshl_b32 s{s_t2}, s{s_t2}, 9
    s_add_u32 s{s_t1}, s{s_t1}, s{s_t2}""")
    for s in range(4):
        cs = ep + 16*(s&1); acc = ACC+16*s; pk = ep+32+8*(s&1)
        A(f"s_lshl_b32 s{s_t0}, s{s_tile+s}, 7")
        A(f"v_add_u32 v{vt+6}, s{s_t0}, v{vt}")
        for g in range(4): A(f"ds_read_b128 v[{cs+4*g}:{cs+4*g+3}], v{vt+6} offset:{g*32}")
        A("s_waitcnt lgkmcnt(0)")
        for j in range(8):
            A(f"v_pk_fma_f32 v[{acc+2*j}:{acc+2*j+1}], v[{cs+2*j}:{cs+2*j+1}], v[{mean}:{mean+1}], v[{acc+2*j}:{acc+2*j+1}] op_sel_hi:[1,0,1] neg_lo:[0,1,0] neg_hi:[0,1,0]")
        for j in range(8):
            A(f"v_pk_mul_f32 v[{acc+2*j}:{acc+2*j+1}], v[{acc+2*j}:{acc+2*j+1}], v[{rs}:{rs+1}] op_sel_hi:[1,0]")
        for j in range(8):
            A(f"v_cvt_pk_bf16_f32 v{pk+j}, v{acc+2*j}, v{acc+2*j+1}")
        A(f"""v_permlane32_swap_b32 v{pk}, v{pk+2}
        v_permlane32_swap_b32 v{pk+1}, v{pk+3}
        v_permlane32_swap_b32 v{pk+4}, v{pk+6}
        v_permlane32_swap_b32 v{pk+5}, v{pk+7}
        s_lshl_b32 s{s_t0}, s{s_tile+s}, 11
        s_add_u32 s{s_t0}, s{s_t0}, s{s_t1}
        buffer_store_dwordx4 v[{pk}:{pk+3}], v{vt+1}, s[{sWS}:{sWS+3}], s{s_t0} offen
        buffer_store_dwordx4 v[{pk+4}:{pk+7}], v{vt+1}, s[{sWS}:{sWS+3}], s{s_t0} offen offset:1024""")
    A("s_branch L_g1_rl")
    A.label("L_g1_vtype")
    mainloop(0, True, 3)
    ST()
    mean, rs = finalize_stats(0)
    a=vt; b=vt+1
    mr = ep+32
    A(f"""v_and_b32 v{a}, 31, v{l}
    v_lshlrev_b32 v{a}, 2, v{a}
    s_lshl_b32 s{s_t0}, s{s_rt}, 7
    s_add_u32 s{s_t0}, s{s_t0}, {RWR}
    v_add_u32 v{b}, s{s_t0}, v{a}
    ds_write_b32 v{b}, v{mean}
    ds_write_b32 v{b}, v{rs} offset:512
    v_lshrrev_b32 v{b}, 5, v{l}
    v_lshlrev_b32 v{b}, 4, v{b}
    v_add_u32 v{b}, s{s_t0}, v{b}
    s_waitcnt lgkmcnt(0)""")
    for g in range(4):
        A(f"ds_read_b128 v[{mr+4*g}:{mr+4*g+3}], v{b} offset:{g*32}")
        A(f"ds_read_b128 v[{mr+16+4*g}:{mr+16+4*g+3}], v{b} offset:{512+g*32}")
    A(f"""v_lshrrev_b32 v{b}, 5, v{l}
    v_mul_u32_u24 v{b}, 10240, v{b}
    v_lshl_add_u32 v{b}, v{a}, 2, v{b}
    s_lshl_b32 s{s_t2}, s{s_rb}, 2
    s_add_u32 s{s_t2}, s{s_t2}, s{s_rt}
    s_mul_i32 s{s_t2}, s{s_t2}, 40960
    s_lshl_b32 s{s_t3}, s{s_gl}, 11
    s_add_u32 s{s_t1}, s{s_t2}, s{s_t3}
    s_add_u32 s{s_t1}, s{s_t1}, {VF}
    v_add_u32 v{a}, {CSR}, v{a}""")
    for s in range(4):
        acc = ACC+16*s; pk = ep+8*(s&1); csv = vt+2+2*(s&1)
        A(f"s_lshl_b32 s{s_t0}, s{s_tile+s}, 7")
        A(f"v_add_u32 v{vt+6}, s{s_t0}, v{a}")
        A(f"ds_read_b32 v{csv}, v{vt+6}")
        A("s_waitcnt lgkmcnt(0)")
        for j in range(8):
            A(f"v_pk_fma_f32 v[{acc+2*j}:{acc+2*j+1}], v[{mr+2*j}:{mr+2*j+1}], v[{csv}:{csv+1}], v[{acc+2*j}:{acc+2*j+1}] op_sel_hi:[1,0,1] neg_lo:[0,1,0] neg_hi:[0,1,0]")
        for j in range(8):
            A(f"v_pk_mul_f32 v[{acc+2*j}:{acc+2*j+1}], v[{acc+2*j}:{acc+2*j+1}], v[{mr+16+2*j}:{mr+16+2*j+1}]")
        for j in range(8):
            A(f"v_cvt_pk_bf16_f32 v{pk+j}, v{acc+2*j}, v{acc+2*j+1}")
        A(f"""s_lshl_b32 s{s_t0}, s{s_tile+s}, 9
        s_add_u32 s{s_t0}, s{s_t0}, s{s_t1}
        buffer_store_dwordx4 v[{pk}:{pk+3}], v{b}, s[{sWS}:{sWS+3}], s{s_t0} offen
        s_add_u32 s{s_t0}, s{s_t0}, 20480
        buffer_store_dwordx4 v[{pk+4}:{pk+7}], v{b}, s[{sWS}:{sWS+3}], s{s_t0} offen""")
    A.label("L_g1_rl")
    ST()
    rl_process(s_u, "a")
    A(f"s_cmp_eq_u32 s{s_ty}, 3")
    A(f"s_cbranch_scc0 L_g1_end0")
    A("s_waitcnt lgkmcnt(0)")
    A("s_barrier")
    A(f"s_add_u32 s{s_u}, s{s_rb}, 256")
    rl_setup_and_issue(s_u)
    A("s_waitcnt vmcnt(0)")
    A("s_barrier")
    rl_process(s_u, "b")
    A.label("L_g1_end0")
    ST()
    ST.dump(sWS, None, vt, 0) if False else None
    A("s_branch L_g1_fin")

    A.label("L_g1_ch1")
    for stg in range(3): dma_chunk(stg, 1)
    A(f"""v_lshlrev_b32 v{vt}, 2, v{l}
    s_mul_i32 s{s_t0}, s{s_g}, 192
    buffer_load_dword v{vt+7}, v{vt}, s[{sB1}:{sB1+3}], s{s_t0} offen""")
    A(f"s_mov_b32 s{s_ones}, 0x3f803f80")
    A(f"v_mov_b32 v{v_sum}, 0\nv_mov_b32 v{v_cs}, 0")
    A(f"v_mov_b32 v{ep+63}, 0")
    frag_addr(1)
    mainloop(1, False, 1)
    ST()
    A(f"""v_lshlrev_b32 v{vt}, 16, v{vt+7}
    v_and_b32 v{vt+1}, 0xffff0000, v{vt+7}
    v_lshlrev_b32 v{vt+2}, 3, v{l}
    v_add_u32 v{vt+2}, {B1R}, v{vt+2}
    v_cmp_gt_u32 vcc, 48, v{l}
    s_and_saveexec_b64 s[{s_ex}:{s_ex+1}], vcc
    ds_write_b64 v{vt+2}, v[{vt}:{vt+1}]
    s_mov_b64 exec, s[{s_ex}:{s_ex+1}]""")
    mean, rs = finalize_stats(1)
    nmr = vt+2
    A(f"v_mul_f32 v{mean}, v{mean}, v{rs}")
    A(f"""v_bfe_u32 v{vt}, v{l}, 4, 1
    v_lshlrev_b32 v{vt}, 10, v{vt}
    v_lshrrev_b32 v{vt+1}, 5, v{l}
    v_lshlrev_b32 v{vt+1}, 4, v{vt+1}
    v_and_b32 v{vt+6}, 15, v{l}
    v_add_u32 v{vt+6}, v{vt+6}, v{vt+1}
    v_lshl_add_u32 v{vt}, v{vt+6}, 4, v{vt}
    s_lshl_b32 s{s_t2}, s{s_rb}, 2
    s_add_u32 s{s_t2}, s{s_t2}, s{s_rt}
    s_lshr_b32 s{s_t3}, s{s_t2}, 1
    s_mul_i32 s{s_t3}, s{s_t3}, 68
    s_mul_i32 s{s_t1}, s{s_g}, 3
    s_add_u32 s{s_t3}, s{s_t3}, s{s_t1}
    s_lshl_b32 s{s_t3}, s{s_t3}, 12
    s_and_b32 s{s_t2}, s{s_t2}, 1
    s_lshl_b32 s{s_t2}, s{s_t2}, 11
    s_add_u32 s{s_t3}, s{s_t3}, s{s_t2}
    s_add_u32 s{s_t1}, s{s_t3}, {AF}""")
    c0 = -2.0*0.7978845608028654*LOG2E; c1 = c0*0.044715
    A(f"s_mov_b32 s{s_t2}, {hx(f2u(c1))}\ns_mov_b32 s{s_t3}, {hx(f2u(c0))}")
    A(f"v_mov_b32 v{ep+60}, s{s_t3}\nv_mov_b32 v{ep+62}, s{s_t2}")
    A(f"v_add_u32 v{vt+1}, {CSR+512}, v{vt+1}")
    for s in range(3):
        cs = ep; bb = ep+16; acc = ACC+16*s; tmp = ep+32; pk = ep+48
        A(f"s_lshl_b32 s{s_t0}, s{s_tile+s}, 7")
        A(f"v_add_u32 v{vt+6}, s{s_t0}, v{vt+1}")
        for g in range(4):
            A(f"ds_read_b128 v[{cs+4*g}:{cs+4*g+3}], v{vt+6} offset:{g*32}")
            A(f"ds_read_b128 v[{bb+4*g}:{bb+4*g+3}], v{vt+6} offset:{B1R-(CSR+512)+g*32}")
        A("s_waitcnt lgkmcnt(0)")
        for j in range(8):
            A(f"v_pk_fma_f32 v[{bb+2*j}:{bb+2*j+1}], v[{cs+2*j}:{cs+2*j+1}], v[{mean}:{mean+1}], v[{bb+2*j}:{bb+2*j+1}] op_sel_hi:[1,0,1] neg_lo:[0,1,0] neg_hi:[0,1,0]")
        for j in range(8):
            A(f"v_pk_fma_f32 v[{acc+2*j}:{acc+2*j+1}], v[{acc+2*j}:{acc+2*j+1}], v[{rs}:{rs+1}], v[{bb+2*j}:{bb+2*j+1}] op_sel_hi:[1,0,1]")
        for j in range(8):
            A(f"v_pk_mul_f32 v[{tmp+2*j}:{tmp+2*j+1}], v[{acc+2*j}:{acc+2*j+1}], v[{acc+2*j}:{acc+2*j+1}]")
        for j in range(8):
            A(f"v_pk_fma_f32 v[{tmp+2*j}:{tmp+2*j+1}], v[{tmp+2*j}:{tmp+2*j+1}], v[{ep+62}:{ep+63}], v[{ep+60}:{ep+61}] op_sel_hi:[1,0,0]")
        for j in range(8):
            A(f"v_pk_mul_f32 v[{tmp+2*j}:{tmp+2*j+1}], v[{tmp+2*j}:{tmp+2*j+1}], v[{acc+2*j}:{acc+2*j+1}]")
        for j in range(16):
            A(f"v_exp_f32 v{tmp+j}, v{tmp+j}")
        for j in range(8):
            A(f"v_pk_add_f32 v[{tmp+2*j}:{tmp+2*j+1}], v[{tmp+2*j}:{tmp+2*j+1}], 1.0 op_sel_hi:[1,0]")
        for j in range(16):
            A(f"v_rcp_f32 v{tmp+j}, v{tmp+j}")
        for j in range(8):
            A(f"v_pk_mul_f32 v[{acc+2*j}:{acc+2*j+1}], v[{acc+2*j}:{acc+2*j+1}], v[{tmp+2*j}:{tmp+2*j+1}]")
        for j in range(8):
            A(f"v_cvt_pk_bf16_f32 v{pk+j}, v{acc+2*j}, v{acc+2*j+1}")
        A(f"""s_lshl_b32 s{s_t0}, s{s_tile+s}, 12
        s_add_u32 s{s_t0}, s{s_t0}, s{s_t1}
        buffer_store_dwordx4 v[{pk}:{pk+3}], v{vt}, s[{sWS}:{sWS+3}], s{s_t0} offen
        buffer_store_dwordx4 v[{pk+4}:{pk+7}], v{vt}, s[{sWS}:{sWS+3}], s{s_t0} offen offset:512""")
    A(f"s_cmp_eq_u32 s{s_ty}, 3")
    A(f"s_cbranch_scc0 L_g1_fin")
    A("s_barrier")
    A("s_barrier")
    A.label("L_g1_fin")
    if prof:
        ST()
        A(f"s_lshl_b32 s{s_t0}, s2, 3\ns_add_u32 s{s_t0}, s{s_t0}, s{s_w}")
        ST.dump(sWS, s_t0, vt, 0)
    A.label("L_g1_done")
    A("s_endpgm")
    return V.hi
```

```python
from common import *
from att import VM
G3_BLOCK = 256
G3_LDS = 61440

def gen_g3(A, name="g3_kernel", prof=False, NST=4, **kw):
    kernel_header(A, name)
    V = Regs(1, 256, "v"); Sg = Regs(8, 100, "s")
    sWS = Sg.alloc(4,4); sX = Sg.alloc(4,4); sB2 = Sg.alloc(4,4); sO = Sg.alloc(4,4)
    pX = Sg.alloc(2,2); pB2 = Sg.alloc(2,2); pO = Sg.alloc(2,2); pWS = Sg.alloc(2,2)
    s_w = Sg.alloc(); s_rb = Sg.alloc(); s_cb = Sg.alloc(); s_t = Sg.alloc(4); s_a = Sg.alloc(); s_b = Sg.alloc(); s_xo = Sg.alloc()
    ST = Stamp(A, prof, Sg.alloc(10,2), 8)
    l = V.alloc()
    vA = V.alloc(4); vW = V.alloc(); vW4 = V.alloc(); vXo = V.alloc(); vL = V.alloc(3)
    XR_ = V.alloc(10,2); BR = V.alloc(10,2)
    ACC = V.alloc(80,4)
    STG = V.alloc(36*NST,4)
    A(f"s_cmp_ge_u32 s2, 256")
    A(f"s_cbranch_scc1 L_g3_done")
    A(f"s_load_dwordx2 s[{pX}:{pX+1}], s[0:1], {KA['x']}")
    A(f"s_load_dwordx2 s[{pB2}:{pB2+1}], s[0:1], {KA['b2']}")
    A(f"s_load_dwordx2 s[{pO}:{pO+1}], s[0:1], {KA['out']}")
    A(f"s_load_dwordx2 s[{pWS}:{pWS+1}], s[0:1], {KA['ws']}")
    ST()
    A(f"""v_lshrrev_b32 v{l}, 6, v0
    v_readfirstlane_b32 s{s_w}, v{l}
    v_and_b32 v{l}, 63, v0
    s_and_b32 s{s_rb}, s2, 7
    s_lshl_b32 s{s_rb}, s{s_rb}, 2
    s_lshr_b32 s{s_t}, s2, 3
    s_and_b32 s{s_t}, s{s_t}, 3
    s_add_u32 s{s_rb}, s{s_rb}, s{s_t}
    s_lshr_b32 s{s_cb}, s2, 5
    v_lshlrev_b32 v{vW}, 4, v{l}
    v_add_u32 v{vW4}, 4096, v{vW}""")
    for s in range(4):
        A(f"""s_add_u32 s{s_t}, s{s_w}, {s}
        s_and_b32 s{s_t}, s{s_t}, 3
        s_lshl_b32 s{s_t+1}, s{s_t}, 10
        v_add_u32 v{vA+s}, s{s_t+1}, v{vW}""")
        if s >= 1:
            A(f"""s_mul_i32 s{s_t+1}, s{s_t}, {15*1024}
            s_add_u32 s{s_t+1}, s{s_t+1}, {(s-1)*5*1024}
            v_add_u32 v{vL+s-1}, s{s_t+1}, v{vW}""")
    A(f"""s_mul_i32 s{s_a}, s{s_rb}, 68
    s_add_u32 s{s_a}, s{s_a}, s{s_w}
    s_lshl_b32 s{s_a}, s{s_a}, 12
    s_add_u32 s{s_a}, s{s_a}, {AF}
    s_mul_i32 s{s_b}, s{s_cb}, 68
    s_add_u32 s{s_b}, s{s_b}, s{s_w}
    s_mul_i32 s{s_b}, s{s_b}, 5120
    s_add_u32 s{s_b}, s{s_b}, {WF}""")
    A(f"""v_and_b32 v{vXo}, 15, v{l}
    v_mul_u32_u24 v{vXo}, 1280, v{vXo}
    v_lshrrev_b32 v{XR_}, 4, v{l}
    v_lshlrev_b32 v{XR_}, 3, v{XR_}
    v_add_u32 v{vXo}, v{vXo}, v{XR_}
    s_lshl_b32 s{s_xo}, s{s_rb}, 2
    s_add_u32 s{s_xo}, s{s_xo}, s{s_w}
    s_mul_i32 s{s_xo}, s{s_xo}, {16*1280}
    s_mul_i32 s{s_t}, s{s_cb}, 160
    s_add_u32 s{s_xo}, s{s_xo}, s{s_t}
    v_mov_b32 v{XR_+1}, v{XR_}
    s_waitcnt lgkmcnt(0)""")
    srd(A, sWS, pWS, WS_REC); srd(A, sX, pX, S*D*2); srd(A, sB2, pB2, D*2); srd(A, sO, pO, S*D*2)
    vm = VM()
    def stage_loads(k):
        b = STG + 36*(k % NST)
        out = []
        for s in range(4):
            out.append(f"buffer_load_dwordx4 v[{b+4*s}:{b+4*s+3}], v{vA+s}, s[{sWS}:{sWS+3}], s{s_a} offen")
        for nt in range(5):
            if nt < 4: out.append(f"buffer_load_dwordx4 v[{b+16+4*nt}:{b+16+4*nt+3}], v{vW}, s[{sWS}:{sWS+3}], s{s_b} offen offset:{nt*1024}")
            else:      out.append(f"buffer_load_dwordx4 v[{b+16+4*nt}:{b+16+4*nt+3}], v{vW4}, s[{sWS}:{sWS+3}], s{s_b} offen")
        adv = [f"s_add_u32 s{s_a}, s{s_a}, {4*4096}", f"s_add_u32 s{s_b}, s{s_b}, {4*5120}"]
        return out, adv
    NK = 17
    for k in range(NST-1):
        ld, adv = stage_loads(k)
        for x in ld: A(x); vm.issue(f"S{k}")
        for x in adv: A(x)
    for nt in range(5):
        A(f"buffer_load_dwordx2 v[{BR+2*nt}:{BR+2*nt+1}], v{XR_+1}, s[{sB2}:{sB2+3}], s{s_t} offen offset:{nt*32}"); vm.issue("B")
    A(f"v_mov_b32 v{vL+0}, v{vL+0}")
    xs = [f"buffer_load_dwordx2 v[{XR_+2*nt}:{XR_+2*nt+1}], v{vXo}, s[{sX}:{sX+3}], s{s_xo} offen offset:{nt*32}" for nt in range(5)]
    ST()
    xdone = False
    for k in range(NK):
        b = STG + 36*(k % NST)
        vm.wait(A, f"S{k}")
        if k == 1:
            vm.wait(A, "B")
            for x in xs: A(x); vm.issue("X")
        ld, adv = stage_loads(k + NST - 1) if k + NST - 1 < NK else ([], [])
        j = 0
        for nt in range(5):
            for s in range(4):
                acc = ACC + (s*5+nt)*4
                c = "0" if k == 0 else f"v[{acc}:{acc+3}]"
                A(f"v_mfma_f32_16x16x32_bf16 v[{acc}:{acc+3}], v[{b+16+4*nt}:{b+16+4*nt+3}], v[{b+4*s}:{b+4*s+3}], {c}")
                if (nt*4+s) % 2 == 1 and j < len(ld):
                    A(ld[j]); vm.issue(f"S{k+NST-1}"); j += 1
        assert j == len(ld)
        for x in adv: A(x)
    ST()
    for s in range(1, 4):
        for nt in range(5):
            acc = ACC + (s*5+nt)*4
            A(f"ds_write_b128 v{vL+s-1}, v[{acc}:{acc+3}] offset:{nt*1024}")
    A(f"s_mul_i32 s{s_t+1}, s{s_w}, {15*1024}")
    A(f"v_add_u32 v{vW4}, s{s_t+1}, v{vW}")
    A("s_waitcnt lgkmcnt(0)")
    A("s_barrier")
    T = STG
    for j in range(15):
        A(f"ds_read_b128 v[{T+4*j}:{T+4*j+3}], v{vW4} offset:{j*1024}")
    vm.wait(A, "X")
    T2 = STG + 64
    for nt in range(5):
        for h in range(2):
            xr = XR_+2*nt+h; br = BR+2*nt+h; d = T2 + nt*4 + 2*h
            A(f"""v_lshlrev_b32 v{d}, 16, v{xr}
            v_and_b32 v{d+1}, 0xffff0000, v{xr}
            v_lshlrev_b32 v{xr}, 16, v{br}
            v_and_b32 v{br}, 0xffff0000, v{br}
            v_add_f32 v{d}, v{d}, v{xr}
            v_add_f32 v{d+1}, v{d+1}, v{br}""")
    for sp in range(3):
        A(f"s_waitcnt lgkmcnt({10 - 5*sp})")
        for nt in range(5):
            acc = ACC + nt*4; tt = T + (sp*5+nt)*4
            for h in range(2):
                A(f"v_pk_add_f32 v[{acc+2*h}:{acc+2*h+1}], v[{acc+2*h}:{acc+2*h+1}], v[{tt+2*h}:{tt+2*h+1}]")
    for nt in range(5):
        acc = ACC + nt*4; d = T2 + nt*4
        for h in range(2):
            A(f"v_pk_add_f32 v[{acc+2*h}:{acc+2*h+1}], v[{acc+2*h}:{acc+2*h+1}], v[{d+2*h}:{d+2*h+1}]")
        A(f"v_cvt_pk_bf16_f32 v{d}, v{acc}, v{acc+1}")
        A(f"v_cvt_pk_bf16_f32 v{d+1}, v{acc+2}, v{acc+3}")
        A(f"buffer_store_dwordx2 v[{d}:{d+1}], v{vXo}, s[{sO}:{sO+3}], s{s_xo} offen offset:{nt*32}")
    if prof:
        ST()
        A(f"s_lshl_b32 s{s_t}, s2, 3\ns_add_u32 s{s_t}, s{s_t}, s{s_w}")
        ST.dump(sWS, s_t, 2, 2)
    A.label("L_g3_done")
    A("s_endpgm")
    return V.hi
```

```python
from common import *
ATT_LDS = 0
NEGBIG = -1.0e30

class VM:
    def __init__(self): self.q = []
    def issue(self, tag): self.q.append(tag)
    def wait(self, A, tag):
        if tag not in self.q: return
        i = max(k for k, t in enumerate(self.q) if t == tag)
        n = len(self.q) - 1 - i
        A(f"s_waitcnt vmcnt({n})")
        self.q = self.q[i+1:]
    def copy(self):
        v = VM(); v.q = list(self.q); return v

def att_body(A, V, Sg, sWS, s_rb, s_head, v_lane, ST, tagp="att", store_mods="", pre_issue=None):
    l = v_lane
    s_t = Sg.alloc(4); s_kb = Sg.alloc(10); s_imin = Sg.alloc(); s_qa = Sg.alloc(); s_qb = Sg.alloc()
    s_par = Sg.alloc(); s_om = Sg.alloc(); s_oh = Sg.alloc()
    sHH = Sg.alloc(2,2); sVM = Sg.alloc(2,2); sLO = Sg.alloc(2,2); sC = Sg.alloc(16,2)
    KM = V.alloc(40,4); KH = V.alloc(10,2); VB = V.alloc(32,4)
    QM = V.alloc(8,4); QH0 = V.alloc(4,2); QH1 = V.alloc(4,2)
    S_ = V.alloc(32,4); O_ = V.alloc(32,4); CN = V.alloc(32,4); M8 = V.alloc(16,4); M0 = V.alloc(16,4); P_ = V.alloc(16,4)
    mq = V.alloc(4,2)
    vV0 = V.alloc(); vV1 = V.alloc()
    vt = CN; vK = CN+4; vKh = CN+5
    vm = VM()
    A(f"""s_and_b32 s{s_par}, s{s_head}, 1
    s_lshr_b32 s{s_t}, s{s_head}, 1
    s_mul_i32 s{s_t}, s{s_t}, 5
    s_add_u32 s{s_oh}, s{s_t}, 2
    s_mul_i32 s{s_om}, s{s_par}, 3
    s_add_u32 s{s_om}, s{s_om}, s{s_t}
    s_lshl_b32 s{s_t+1}, s{s_rb}, 1
    s_mul_i32 s{s_qa}, s{s_t+1}, 40960
    s_add_u32 s{s_qb}, s{s_qa}, 40960
    s_sub_i32 s{s_imin}, 8, s{s_t+1}
    s_max_i32 s{s_imin}, s{s_imin}, 0
    s_mov_b32 s{sHH}, 0
    s_mov_b32 s{sHH+1}, -1
    s_mov_b32 s{sLO}, -1
    s_mov_b32 s{sLO+1}, 0
    s_mov_b32 s{sVM}, 0xfffff
    s_mov_b32 s{sVM+1}, 0xfffff""")
    A(f"""v_lshlrev_b32 v{vt}, 4, v{l}
    v_and_b32 v{vt+1}, 31, v{l}
    v_lshlrev_b32 v{vt+1}, 4, v{vt+1}
    s_lshl_b32 s{s_t}, s{s_par}, 3
    v_add_u32 v{vt+1}, s{s_t}, v{vt+1}
    s_lshl_b32 s{s_t}, s{s_om}, 9
    s_lshl_b32 s{s_t+1}, s{s_oh}, 9
    v_add_u32 v{vt}, s{s_t}, v{vt}
    v_add_u32 v{vt+1}, s{s_t+1}, v{vt+1}""")
    assert QF == 0
    A(f"""buffer_load_dwordx4 v[{QM}:{QM+3}], v{vt}, s[{sWS}:{sWS+3}], s{s_qa} offen
    buffer_load_dwordx4 v[{QM+4}:{QM+7}], v{vt}, s[{sWS}:{sWS+3}], s{s_qb} offen
    buffer_load_dwordx2 v[{QH0}:{QH0+1}], v{vt+1}, s[{sWS}:{sWS+3}], s{s_qa} offen
    buffer_load_dwordx2 v[{QH0+2}:{QH0+3}], v{vt+1}, s[{sWS}:{sWS+3}], s{s_qb} offen""")
    for _ in range(4): vm.issue("Q")
    A(f"""v_add_u32 v{vK}, {KF}, v{vt}
    v_lshrrev_b32 v{vt+2}, 5, v{l}
    v_mul_u32_u24 v{vt+3}, 40960, v{vt+2}
    v_add_u32 v{vKh}, {KF}, v{vt+1}
    v_add_u32 v{vKh}, v{vKh}, v{vt+3}
    s_lshl_b32 s{s_t+1}, s{s_rb}, 1
    s_sub_i32 s{s_t+1}, s{s_t+1}, 8""")
    for i in range(9, -1, -1):
        A(f"""s_add_i32 s{s_kb+i}, s{s_t+1}, {i}
        s_max_i32 s{s_kb+i}, s{s_kb+i}, 0
        s_mul_i32 s{s_kb+i}, s{s_kb+i}, 40960""")
        if i & 1 == 0:
            p = i >> 1
            A(f"buffer_load_dwordx2 v[{KH+2*p}:{KH+2*p+1}], v{vKh}, s[{sWS}:{sWS+3}], s{s_kb+i} offen"); vm.issue(f"KH{p}")
            for ii in (i+1, i):
                A(f"buffer_load_dwordx4 v[{KM+4*ii}:{KM+4*ii+3}], v{vK}, s[{sWS}:{sWS+3}], s{s_kb+ii} offen"); vm.issue(f"K{ii}")
    A(f"""v_and_b32 v{vt}, 31, v{l}
    v_add_u32 v{vt+1}, 4, v{vt}
    v_add_u32 v{vt+3}, -16, v{vt}
    v_cmp_gt_u32 vcc, 16, v{vt}
    v_cndmask_b32_e64 v{vt+1}, v{vt+3}, v{vt+1}, vcc
    s_cmp_eq_u32 s{s_par}, 1
    s_cselect_b64 s[{sC}:{sC+1}], -1, 0
    v_cndmask_b32_e64 v{vt}, v{vt}, v{vt+1}, s[{sC}:{sC+1}]
    s_mul_i32 s{s_t}, s{s_head}, {20*16}
    s_add_u32 s{s_t}, s{s_t}, {VF}
    v_lshlrev_b32 v{vt}, 4, v{vt}
    v_mul_u32_u24 v{vt+2}, 10240, v{vt+2}
    v_add_u32 v{vt}, v{vt}, v{vt+2}
    v_add_u32 v{vV0}, s{s_t}, v{vt}
    v_add_u32 v{vV1}, 20480, v{vV0}
    s_mov_b32 s{s_t+2}, 0x3f803f80
    s_mov_b32 s{s_t+3}, 0x3f803f80""")
    assert (s_t+2) % 2 == 0
    for j in range(16):
        A(f"v_pk_mov_b32 v[{VB+2*j}:{VB+2*j+1}], s[{s_t+2}:{s_t+3}], s[{s_t+2}:{s_t+3}] op_sel:[0,1]")
    def loadV(i, vmx):
        b = VB + 8*(i & 3)
        A(f"s_mov_b64 exec, s[{sVM}:{sVM+1}]")
        A(f"buffer_load_dwordx4 v[{b}:{b+3}], v{vV0}, s[{sWS}:{sWS+3}], s{s_kb+i} offen")
        A(f"buffer_load_dwordx4 v[{b+4}:{b+7}], v{vV1}, s[{sWS}:{sWS+3}], s{s_kb+i} offen")
        A(f"s_mov_b64 exec, -1")
        vmx.issue(f"V{i}"); vmx.issue(f"V{i}")
    for i in (9, 8, 7, 6): loadV(i, vm)
    if pre_issue: pre_issue(vm)
    A(f"""v_and_b32 v{vt}, 31, v{l}
    v_lshrrev_b32 v{vt+1}, 5, v{l}
    v_lshlrev_b32 v{vt+1}, 2, v{vt+1}
    v_sub_u32 v{vt}, v{vt}, v{vt+1}
    v_mov_b32 v{vt+1}, {hx(f2u(NEGBIG))}""")
    for half in range(2):
        for r in range(8):
            rr = half*8 + r; c = 8*(rr >> 2) + (rr & 3)
            A(f"v_cmp_le_i32 s[{sC+2*r}:{sC+2*r+1}], {c}, v{vt}")
        for r in range(8):
            rr = half*8 + r
            A(f"v_cndmask_b32_e64 v{M8+rr}, v{vt+1}, 0, s[{sC+2*r}:{sC+2*r+1}]")
            A(f"v_cndmask_b32_e64 v{M0+rr}, 0, v{vt+1}, s[{sC+2*r}:{sC+2*r+1}]")
    ST()
    vm.wait(A, "Q")
    for q in range(2):
        for j in range(2):
            A(f"v_cndmask_b32_e64 v{QH1+2*q+j}, 0, v{QH0+2*q+j}, s[{sHH}:{sHH+1}]")
            A(f"v_cndmask_b32_e64 v{QH0+2*q+j}, v{QH0+2*q+j}, 0, s[{sHH}:{sHH+1}]")
    units = [(9,1)] + [(i,q) for i in range(8,0,-1) for q in (0,1)] + [(0,0)]
    def mask_of(i, q):
        if (q == 0 and i == 8) or (q == 1 and i == 9): return M8
        if (q == 0 and i == 0) or (q == 1 and i == 1): return M0
        return None
    def s_main(i, q, dst, csrc):
        A(f"v_mfma_f32_32x32x16_bf16 v[{dst}:{dst+15}], v[{KM+4*i}:{KM+4*i+3}], v[{QM+4*q}:{QM+4*q+3}], {csrc}")
    def s_hi(i, q, dst):
        qh = (QH1 if (i & 1) else QH0) + 2*q
        p = i >> 1
        A(f"v_mfma_f32_32x32x8_bf16 v[{dst}:{dst+15}], v[{KH+2*p}:{KH+2*p+1}], v[{qh}:{qh+1}], v[{dst}:{dst+15}]")
    B1 = [S_+16, S_, O_, O_+16]
    seen = [False, False]
    def maxops(n):
        i, q = units[n]; b = B1[n % 4]; m = mq + 2*q
        out = []
        if not seen[q]:
            out.append(f"v_max3_f32 v{m}, v{b}, v{b+1}, v{b+2}")
            for k in range(6): out.append(f"v_max3_f32 v{m}, v{m}, v{b+3+2*k}, v{b+4+2*k}")
            out.append(f"v_max_f32 v{m}, v{m}, v{b+15}")
            seen[q] = True
        else:
            for k in range(8): out.append(f"v_max3_f32 v{m}, v{m}, v{b+2*k}, v{b+2*k+1}")
        return out
    def p1_issue(n, fill):
        i, q = units[n]; b = B1[n % 4]
        vm.wait(A, f"KH{i>>1}"); vm.wait(A, f"K{i}")
        mk = mask_of(i, q)
        s_main(i, q, b, f"v[{mk}:{mk+15}]" if mk else "0")
        for x in fill[:4]: A(x)
        s_hi(i, q, b)
        for x in fill[4:]: A(x)
    L1 = f"L_{tagp}_p1exit"; L1d = f"L_{tagp}_p1done"
    p1_issue(0, []); p1_issue(1, [])
    for n in range(2, len(units)):
        i, q = units[n]
        if q == 0 and (i & 1) and i < 8:
            A(f"s_cmp_gt_u32 s{s_imin}, {i}")
            A(f"s_cbranch_scc1 {L1}")
        p1_issue(n, maxops(n-2))
    for x in maxops(len(units)-2): A(x)
    for x in maxops(len(units)-1): A(x)
    A(f"s_branch {L1d}")
    A.label(L1)
    for (b, m) in ((B1[1], mq), (B1[2], mq+2)):
        for k in range(8): A(f"v_max3_f32 v{m}, v{m}, v{b+2*k}, v{b+2*k+1}")
    A.label(L1d)
    ST()
    for q in range(2):
        m = mq + 2*q
        A(f"v_mov_b32 v{m+1}, v{m}")
    for q in range(2):
        m = mq + 2*q
        A(f"v_permlane32_swap_b32 v{m}, v{m+1}")
    for q in range(2):
        m = mq + 2*q
        A(f"v_max_f32 v{m}, v{m}, v{m+1}")
    for q in (1, 0):
        m = mq + 2*q
        for j in range(8):
            A(f"v_pk_add_f32 v[{CN+16*q+2*j}:{CN+16*q+2*j+1}], v[{m}:{m+1}], 0 op_sel_hi:[0,0] neg_lo:[1,0] neg_hi:[1,0]")
    def sbuf(q): return S_ + 16*q
    def pre_mask(n):
        i, q = units[n]; mk = mask_of(i, q); b = sbuf(q)
        if mk:
            for j in range(8):
                A(f"v_pk_add_f32 v[{b+2*j}:{b+2*j+1}], v[{mk+2*j}:{mk+2*j+1}], v[{CN+16*q+2*j}:{CN+16*q+2*j+1}]")
            return f"v[{b}:{b+15}]"
        return f"v[{CN+16*q}:{CN+16*q+15}]"
    first_pv = [True, True]
    def pv(n, s, vmx, fp, noload=False):
        i, q = units[n]; o = O_ + 16*q; vb = VB + 8*(i & 3) + 4*s; p = P_ + 8*q + 4*s
        if s == 0: vmx.wait(A, f"V{i}")
        c = "0" if (fp[q] and s == 0) else f"v[{o}:{o+15}]"
        A(f"v_mfma_f32_32x32x16_bf16 v[{o}:{o+15}], v[{vb}:{vb+3}], v[{p}:{p+3}], {c}")
        if s == 1:
            fp[q] = False
            last_use = (q == 1) or (i == 0)
            if last_use and i - 4 >= 0 and not noload: loadV(i - 4, vmx)
    def block(n, do_next, vmx, fp, noload=False):
        i, q = units[n]; b = sbuf(q); p = P_ + 8*q
        ex = [f"v_exp_f32 v{b+r}, v{b+r}" for r in range(16)]
        if do_next:
            i2, q2 = units[n+1]
            c = pre_mask(n+1)
            s_main(i2, q2, sbuf(q2), c)
        for x in ex[0:4]: A(x)
        if do_next: s_hi(i2, q2, sbuf(q2))
        for x in ex[4:8]: A(x)
        if n >= 1: pv(n-1, 0, vmx, fp, noload)
        for x in ex[8:12]: A(x)
        if n >= 1: pv(n-1, 1, vmx, fp, noload)
        for x in ex[12:16]: A(x)
        for j in range(8): A(f"v_cvt_pk_bf16_f32 v{p+j}, v{b+2*j}, v{b+2*j+1}")
    i0, q0 = units[0]
    c = pre_mask(0); s_main(i0, q0, sbuf(q0), c); s_hi(i0, q0, sbuf(q0))
    exits = []
    for n in range(len(units)):
        i, q = units[n]
        last = (n == len(units)-1)
        if not last:
            i2, q2 = units[n+1]
            if q2 == 0 and (i2 & 1) and i2 < 8:
                lab = f"L_{tagp}_p2exit{i2}"
                A(f"s_cmp_gt_u32 s{s_imin}, {i2}")
                A(f"s_cbranch_scc1 {lab}")
                exits.append((lab, n, vm.copy(), list(first_pv)))
        block(n, not last, vm, first_pv)
    Lfin = f"L_{tagp}_fin"
    n = len(units)-1
    pv(n, 0, vm, first_pv); pv(n, 1, vm, first_pv)
    A(f"s_branch {Lfin}")
    for (lab, n, vmx, fp) in exits:
        A.label(lab)
        block(n, False, vmx, fp, True)
        pv(n, 0, vmx, fp, True); pv(n, 1, vmx, fp, True)
        A("s_waitcnt vmcnt(0)")
        A(f"s_branch {Lfin}")
    A.label(Lfin)
    ST()
    vt = S_
    A(f"""v_lshrrev_b32 v{vt}, 5, v{l}
    v_add_u32 v{vt}, s{s_om}, v{vt}
    v_lshrrev_b32 v{vt+1}, 2, v{vt}
    v_and_b32 v{vt}, 3, v{vt}
    v_lshlrev_b32 v{vt}, 8, v{vt}
    v_lshl_add_u32 v{vt}, v{vt+1}, 12, v{vt}
    v_bfe_u32 v{vt+1}, v{l}, 4, 1
    v_and_b32 v{vt+2}, 15, v{l}
    v_lshlrev_b32 v{vt+2}, 4, v{vt+2}
    v_lshl_add_u32 v{vt+2}, v{vt+1}, 10, v{vt+2}
    v_add_u32 v{vt}, v{vt}, v{vt+2}
    s_lshr_b32 s{s_t}, s{s_oh}, 2
    s_lshl_b32 s{s_t}, s{s_t}, 12
    s_and_b32 s{s_t+1}, s{s_oh}, 3
    s_lshl_b32 s{s_t+1}, s{s_t+1}, 8
    s_add_u32 s{s_t}, s{s_t}, s{s_t+1}
    s_lshl_b32 s{s_t+1}, s{s_par}, 3
    s_add_u32 s{s_t}, s{s_t}, s{s_t+1}
    v_add_u32 v{vt+1}, s{s_t}, v{vt+2}
    s_mul_i32 s{s_t}, s{s_rb}, {68*4096}
    s_add_u32 s{s_t}, s{s_t}, {AF + 48*4096}
    s_add_u32 s{s_t+1}, s{s_t}, 2048""")
    for q in range(2):
        o = O_ + 16*q; d = mq + 2*q; p = P_ + 8*q
        A(f"v_mov_b32 v{d}, v{o+8}")
        A(f"v_mov_b32 v{d+1}, v{o+8}")
    for q in range(2):
        d = mq + 2*q
        A(f"v_permlane32_swap_b32 v{d}, v{d+1}")
    for q in range(2):
        d = mq + 2*q
        A(f"v_rcp_f32 v{d+1}, v{d+1}")
    for q in range(2):
        o = O_ + 16*q; d = mq + 2*q; p = P_ + 8*q
        for j in range(6):
            A(f"v_pk_mul_f32 v[{o+2*j}:{o+2*j+1}], v[{o+2*j}:{o+2*j+1}], v[{d}:{d+1}] op_sel:[0,1] op_sel_hi:[1,1]")
        for j in range(6):
            A(f"v_cvt_pk_bf16_f32 v{p+j}, v{o+2*j}, v{o+2*j+1}")
        A(f"v_permlane32_swap_b32 v{p}, v{p+2}")
        A(f"v_permlane32_swap_b32 v{p+1}, v{p+3}")
        A(f"buffer_store_dwordx4 v[{p}:{p+3}], v{vt}, s[{sWS}:{sWS+3}], s{s_t+q} offen{store_mods}")
        A(f"s_mov_b64 exec, s[{sLO}:{sLO+1}]")
        A(f"buffer_store_dwordx2 v[{p+4}:{p+5}], v{vt+1}, s[{sWS}:{sWS+3}], s{s_t+q} offen{store_mods}")
        A(f"s_mov_b64 exec, -1")

def gen_att(A, name="att_kernel", prof=False, **kw):
    kernel_header(A, name)
    V = Regs(1, 256, "v"); Sg = Regs(8, 100, "s")
    sWS = Sg.alloc(4,4); pWS = Sg.alloc(2,2)
    s_w = Sg.alloc(); s_rb = Sg.alloc(); s_head = Sg.alloc(); s_x = Sg.alloc()
    ST = Stamp(A, prof, Sg.alloc(10,2), 8)
    v_lane = V.alloc()
    A(f"s_cmp_ge_u32 s2, 256")
    A(f"s_cbranch_scc1 L_att_done")
    A(f"s_load_dwordx2 s[{pWS}:{pWS+1}], s[0:1], {KA['ws']}")
    ST.init(); ST(0)
    A(f"""v_lshrrev_b32 v{v_lane}, 6, v0
    v_readfirstlane_b32 s{s_w}, v{v_lane}
    v_and_b32 v{v_lane}, 63, v0
    s_and_b32 s{s_rb}, s2, 7
    s_lshl_b32 s{s_rb}, s{s_rb}, 2
    s_lshr_b32 s{s_x}, s2, 3
    s_and_b32 s{s_x}, s{s_x}, 3
    s_add_u32 s{s_rb}, s{s_rb}, s{s_x}
    s_lshr_b32 s{s_head}, s2, 5
    s_lshl_b32 s{s_head}, s{s_head}, 2
    s_add_u32 s{s_head}, s{s_head}, s{s_w}
    s_waitcnt lgkmcnt(0)""")
    srd(A, sWS, pWS, WS_REC)
    att_body(A, V, Sg, sWS, s_rb, s_head, v_lane, ST)
    if prof:
        ST(6)
        A("s_waitcnt vmcnt(0)")
        ST(7)
        A(f"s_lshl_b32 s{s_x}, s2, 3\ns_add_u32 s{s_x}, s{s_x}, s{s_w}")
        ST.dump(sWS, s_x, 2, 1)
    A.label("L_att_done")
    A("s_endpgm")
    return V.hi
```

```python
from asmlib import *
S=2048; D=640; F=1536; NH=32; DH=20
QF=0; KF=2621440; VF=5242880; AF=7864320; AF_SZ=32*68*4096; WF=AF+AF_SZ; WF_SZ=8*68*5120
WS_USED = WF+WF_SZ
STAMP_OFF = WS_USED
WS_REC = WS_USED + (1<<20)
LOG2E=1.4426950408889634
QSCALE = LOG2E * (DH ** -0.5)
import struct
def f2u(x): return struct.unpack("<I", struct.pack("<f", x))[0]
def hx(x): return f"0x{x & 0xffffffff:08x}"

KA = dict(x=0, wqkv=8, wo=16, bx=24, w1=32, b1=40, w2=48, b2=56, out=64, dbg=72, ws=80)

def srd(A, s, base_s, nbytes):
    A(f"s_mov_b32 s{s}, s{base_s}")
    A(f"s_and_b32 s{s+1}, s{base_s+1}, 0xffff")
    A(f"s_mov_b32 s{s+2}, {nbytes}")
    A(f"s_mov_b32 s{s+3}, 0x20000")

def kernel_header(A, name):
    A(".text")
    A(f".globl {name}")
    A(".p2align 8")
    A(f".type {name},@function")
    A.label(name)

def kernel_desc(name, nvgpr, nsgpr=96):
    acc = (nvgpr+3)//4*4
    return f""".section .rodata,"a"
.p2align 6
.amdhsa_kernel {name}
  .amdhsa_next_free_vgpr {nvgpr}
  .amdhsa_next_free_sgpr {nsgpr}
  .amdhsa_accum_offset {acc}
  .amdhsa_group_segment_fixed_size 0
  .amdhsa_kernarg_size 88
  .amdhsa_user_sgpr_count 2
  .amdhsa_user_sgpr_kernarg_segment_ptr 1
  .amdhsa_system_sgpr_workgroup_id_x 1
  .amdhsa_float_denorm_mode_32 3
  .amdhsa_float_denorm_mode_16_64 3
.end_amdhsa_kernel
"""

class Stamp:
    def __init__(self, A, enabled, sbase, n=8):
        self.A=A; self.en=enabled; self.sb=sbase; self.i=0; self.n=n; self.used=set()
    def __call__(self, idx=None):
        if not self.en: return
        if idx is None: idx = self.i
        assert idx < self.n
        t = self.sb+self.n+(self.n&1)
        import os
        self.A(f"{'s_memtime' if os.environ.get('STAMPCYC') else 's_memrealtime'} s[{t}:{t+1}]")
        self.A("s_waitcnt lgkmcnt(0)")
        self.A(f"s_mov_b32 s{self.sb+idx}, s{t}")
        self.i = idx+1; self.used.add(idx)
    def init(self):
        if not self.en: return
        for j in range(self.n): self.A(f"s_mov_b32 s{self.sb+j}, 0")
    def dump(self, srd_ws, s_wgwave, vtmp, kernel_slot):
        if not self.en: return
        A=self.A
        t = self.sb+self.n+(self.n&1)
        A(f"s_lshl_b32 s{t}, s{s_wgwave}, 5")
        A(f"s_add_u32 s{t}, s{t}, {STAMP_OFF + kernel_slot*65536}")
        A(f"v_mov_b32 v{vtmp}, 0")
        for j in range(self.n):
            A(f"v_mov_b32 v{vtmp+1}, s{self.sb+j}")
            A(f"buffer_store_dword v{vtmp+1}, v{vtmp}, s[{srd_ws}:{srd_ws+3}], s{t} offen offset:{j*4}")
```

```python
from common import *

XR=0; WQR=49152; WHR=98304; RLR=135168
STR=RLR+12288
CSR=STR+1024
B1R=CSR+1024
RWR=B1R+512
G1_LDS=RWR+1024
NCH=10

def gen_g1(A, name="g1_kernel", prof=False, standalone=True, **kw):
    kernel_header(A, name)
    V = Regs(1, 256, "v"); Sg = Regs(8, 96, "s")
    sX=Sg.alloc(4,4); sWQ=Sg.alloc(4,4); sWH=Sg.alloc(4,4); sWS=Sg.alloc(4,4); sRL=Sg.alloc(4,4); sB1=Sg.alloc(4,4)
    pX=Sg.alloc(2,2); pWQ=Sg.alloc(2,2); pWO=Sg.alloc(2,2); pW1=Sg.alloc(2,2); pB1=Sg.alloc(2,2); pW2=Sg.alloc(2,2); pWS=Sg.alloc(2,2)
    s_w=Sg.alloc(); s_rt=Sg.alloc(); s_ch=Sg.alloc(); s_rb=Sg.alloc(); s_g=Sg.alloc(); s_gl=Sg.alloc(); s_ty=Sg.alloc()
    s_ox=Sg.alloc(); s_oq=Sg.alloc(); s_oh=Sg.alloc()
    s_mx=Sg.alloc(); s_mq=Sg.alloc(); s_mh=Sg.alloc()
    s_t0=Sg.alloc(); s_t1=Sg.alloc(); s_t2=Sg.alloc(); s_t3=Sg.alloc()
    s_ones=Sg.alloc(); s_u=Sg.alloc(); s_tile=Sg.alloc(4)
    s_ex=Sg.alloc(2,2)
    ST = Stamp(A, prof, Sg.alloc(10,2), 8)
    v_lane=V.alloc();
    vX0=V.alloc(); vX1=V.alloc(); vQ0=V.alloc(); vQ1=V.alloc(); vH0=V.alloc(); vH1=V.alloc()
    aX=V.alloc(4); aW=V.alloc(4)
    v_sum=V.alloc(); v_cs=V.alloc()
    vt=V.alloc(8,2)
    XF=V.alloc(8,4); WFr=V.alloc(32,4); ACC=V.alloc(64,4)
    ep=V.alloc(64,4)
    A(f"s_cmp_ge_u32 s2, 256")
    A(f"s_cbranch_scc1 L_g1_done")
    A(f"s_load_dwordx4 s[{pX}:{pX+3}], s[0:1], {KA['x']}") if pX % 4 == 0 and pWQ == pX+2 else None
    assert pX % 4 == 0 and pWQ == pX+2
    A(f"s_load_dwordx2 s[{pWO}:{pWO+1}], s[0:1], {KA['wo']}")
    A(f"s_load_dwordx2 s[{pW1}:{pW1+1}], s[0:1], {KA['w1']}")
    A(f"s_load_dwordx2 s[{pB1}:{pB1+1}], s[0:1], {KA['b1']}")
    A(f"s_load_dwordx2 s[{pW2}:{pW2+1}], s[0:1], {KA['w2']}")
    A(f"s_load_dwordx2 s[{pWS}:{pWS+1}], s[0:1], {KA['ws']}")
    ST.init(); ST(0)
    A(f"v_lshrrev_b32 v{vt}, 6, v0")
    A(f"v_and_b32 v{v_lane}, 63, v0")
    A(f"v_readfirstlane_b32 s{s_w}, v{vt}")
    A(f"""s_and_b32 s{s_t0}, s2, 7
    s_lshr_b32 s{s_t1}, s2, 3
    s_and_b32 s{s_rb}, s{s_t0}, 1
    s_lshl_b32 s{s_rb}, s{s_rb}, 3
    s_and_b32 s{s_t2}, s{s_t1}, 7
    s_add_u32 s{s_rb}, s{s_rb}, s{s_t2}
    s_lshr_b32 s{s_g}, s{s_t0}, 1
    s_lshl_b32 s{s_g}, s{s_g}, 2
    s_lshr_b32 s{s_t2}, s{s_t1}, 3
    s_add_u32 s{s_g}, s{s_g}, s{s_t2}
    s_and_b32 s{s_rt}, s{s_w}, 3
    s_lshr_b32 s{s_ch}, s{s_w}, 2""")
    A(f"""s_mul_i32 s{s_ty}, s{s_g}, 52
    s_lshr_b32 s{s_ty}, s{s_ty}, 8
    s_mul_i32 s{s_t2}, s{s_ty}, 5
    s_sub_u32 s{s_gl}, s{s_g}, s{s_t2}""")
    l=v_lane; t=vt
    A(f"""v_lshrrev_b32 v{t}, 3, v{l}
    v_mul_u32_u24 v{t}, 1280, v{t}
    v_lshrrev_b32 v{t+1}, 4, v{l}
    v_and_b32 v{t+2}, 7, v{l}
    v_xor_b32 v{t+2}, v{t+2}, v{t+1}
    v_lshl_add_u32 v{vX0}, v{t+2}, 4, v{t}
    v_xor_b32 v{t+2}, 4, v{t+2}
    v_lshl_add_u32 v{vX1}, v{t+2}, 4, v{t}
    v_add_u32 v{vX1}, {8*1280}, v{vX1}""")
    A(f"""v_mul_u32_u24 v{t}, 3840, v{t+1}
    v_and_b32 v{t+2}, 15, v{l}
    v_lshlrev_b32 v{t+3}, 2, v{t+1}
    v_xor_b32 v{t+2}, v{t+2}, v{t+3}
    v_lshl_add_u32 v{vQ0}, v{t+2}, 4, v{t}
    v_add_u32 v{vQ1}, {4*3840}, v{vQ0}""")
    A(f"""s_lshl_b32 s{s_t0}, s{s_rt}, 1
    s_add_u32 s{s_t0}, s{s_t0}, 4
    s_cmp_eq_u32 s{s_ch}, 0
    s_cselect_b32 s{s_t0}, s{s_rt}, s{s_t0}
    s_lshl_b32 s{s_t1}, s{s_t0}, 6""")
    for (dst, add) in ((vH0, 0), (vH1, 64)):
        A(f"""v_add_u32 v{t}, s{s_t1}, v{l}
        v_add_u32 v{t}, {add}, v{t}
        v_mul_u32_u24 v{t+1}, 43691, v{t}
        v_lshrrev_b32 v{t+1}, 19, v{t+1}
        v_mul_u32_u24 v{t+2}, 12, v{t+1}
        v_sub_u32 v{t+2}, v{t}, v{t+2}
        v_mul_u32_u24 v{t+1}, 3072, v{t+1}
        v_lshl_add_u32 v{dst}, v{t+2}, 4, v{t+1}""")
    A(f"""s_lshl_b32 s{s_mx}, s{s_w}, 11
    s_add_u32 s{s_mq}, s{s_mx}, {WQR}
    s_lshl_b32 s{s_mh}, s{s_t0}, 10
    s_add_u32 s{s_mh}, s{s_mh}, {WHR}""")
    A(f"""s_lshl_b32 s{s_ox}, s{s_rb}, 7
    s_lshl_b32 s{s_t1}, s{s_w}, 4
    s_add_u32 s{s_ox}, s{s_ox}, s{s_t1}
    s_mul_i32 s{s_ox}, s{s_ox}, 1280
    s_lshl_b32 s{s_oq}, s{s_w}, 3
    s_mul_i32 s{s_oq}, s{s_oq}, 3840
    s_lshl_b32 s{s_t1}, s{s_g}, 8
    s_add_u32 s{s_oq}, s{s_oq}, s{s_t1}
    s_mul_i32 s{s_oh}, s{s_g}, 192""")
    A("s_waitcnt lgkmcnt(0)")
    srd(A, sX, pX, S*D*2); srd(A, sWQ, pWQ, 640*3840); srd(A, sWH, pW1, 640*3072); srd(A, sWS, pWS, WS_REC)
    srd(A, sB1, pB1, 3072)

    def dma_chunk(stage, ch):
        n = 0
        for (vo, sd, so, sm, add, ssz) in ((vX0,sX,s_ox,s_mx,0,16384),(vX1,sX,s_ox,s_mx,1024,16384),
                                      (vQ0,sWQ,s_oq,s_mq,0,16384),(vQ1,sWQ,s_oq,s_mq,1024,16384),
                                      (vH0,sWH,s_oh,s_mh,0,12288)) + (((vH1,sWH,s_oh,s_mh,1024,12288),) if ch==1 else ()):
            A(f"s_add_u32 m0, s{sm}, {stage*ssz+add}")
            A(f"buffer_load_dwordx4 v{vo}, s[{sd}:{sd+3}], s{so} offen lds")
            n += 1
        A(f"s_add_u32 s{s_ox}, s{s_ox}, 128")
        A(f"s_add_u32 s{s_oq}, s{s_oq}, {64*3840}")
        A(f"s_add_u32 s{s_oh}, s{s_oh}, {64*3072}")
        return n

    A(f"s_cmp_eq_u32 s{s_ch}, 0")
    A(f"s_cbranch_scc0 L_g1_ch1")

    def rl_setup_and_issue(s_unit):
        A(f"""s_lshr_b32 s{s_t0}, s{s_unit}, 2
        s_cmp_lt_u32 s{s_t0}, 48
        s_cselect_b32 s{sRL}, s{pW2}, s{pWO}
        s_cselect_b32 s{sRL+1}, s{pW2+1}, s{pWO+1}
        s_mov_b32 s{sRL+2}, {640*1280}
        s_cselect_b32 s{sRL+2}, {1536*1280}, s{sRL+2}
        s_cselect_b32 s{s_t1}, 0, 48
        s_and_b32 s{sRL+1}, s{sRL+1}, 0xffff
        s_mov_b32 s{sRL+3}, 0x20000
        s_sub_u32 s{s_t0}, s{s_t0}, s{s_t1}
        s_mul_i32 s{s_t0}, s{s_t0}, {32*1280}
        s_and_b32 s{s_t1}, s{s_unit}, 3
        s_mul_i32 s{s_t1}, s{s_t1}, 320
        s_add_u32 s{s_t0}, s{s_t0}, s{s_t1}
        s_lshl_b32 s{s_t1}, s{s_rt}, 6
        s_lshl_b32 s{s_t2}, s{s_rt}, 10
        s_add_u32 s{s_t2}, s{s_t2}, {RLR}""")
        for j in range(3):
            A(f"""v_add_u32 v{t}, s{s_t1}, v{l}
            v_add_u32 v{t}, {256*j}, v{t}
            v_mul_u32_u24 v{t+1}, 52429, v{t}
            v_lshrrev_b32 v{t+1}, 20, v{t+1}
            v_mul_u32_u24 v{t+2}, 20, v{t+1}
            v_sub_u32 v{t+2}, v{t}, v{t+2}
            v_mul_u32_u24 v{t+1}, 1280, v{t+1}
            v_lshl_add_u32 v{t+4+j}, v{t+2}, 4, v{t+1}""")
        for j in range(3):
            A(f"s_add_u32 m0, s{s_t2}, {4096*j}")
            A(f"buffer_load_dwordx4 v{t+4+j}, s[{sRL}:{sRL+3}], s{s_t0} offen lds")

    def rl_process(s_unit, tag):
        A(f"""s_lshr_b32 s{s_t0}, s{s_unit}, 2
        s_cmp_lt_u32 s{s_t0}, 48
        s_cselect_b32 s{s_t1}, 4, 8
        s_mov_b32 s{s_t2}, 1280
        s_cselect_b32 s{s_t2}, 2560, s{s_t2}
        v_lshrrev_b32 v{t}, 5, v{l}
        v_lshlrev_b32 v{t}, 4, v{t}
        v_bfe_u32 v{t+1}, v{l}, 4, 1
        v_mul_u32_u24 v{t+1}, s{s_t1}, v{t+1}
        v_add_u32 v{t}, v{t}, v{t+1}
        v_bfe_u32 v{t+1}, v{l}, 2, 2
        v_add_u32 v{t}, v{t}, v{t+1}
        v_mul_u32_u24 v{t}, 320, v{t}
        v_and_b32 v{t+1}, 3, v{l}
        v_lshl_add_u32 v{t}, v{t+1}, 3, v{t}
        s_lshl_b32 s{s_t1}, s{s_rt}, 5
        s_add_u32 s{s_t1}, s{s_t1}, {RLR}
        v_add_u32 v{t}, s{s_t1}, v{t}
        v_add_u32 v{t+1}, s{s_t2}, v{t}
        v_lshlrev_b32 v{t+2}, 4, v{l}""")
        for j in range(3):
            if j == 2:
                A(f"s_cmp_ge_u32 s{s_rt}, 2")
                A(f"s_cbranch_scc1 L_rl_skip_{tag}")
            A(f"ds_read_b64_tr_b16 v[{ep+4*j}:{ep+4*j+1}], v{t} offset:{128*j}")
            A(f"ds_read_b64_tr_b16 v[{ep+4*j+2}:{ep+4*j+3}], v{t+1} offset:{128*j}")
            A(f"""s_add_u32 s{s_t1}, s{s_rt}, {4*j}
            s_cmp_ge_u32 s{s_t1}, 5
            s_cselect_b32 s{s_t2}, 1, 0
            s_cselect_b32 s{s_t3}, 5, 0
            s_sub_u32 s{s_t1}, s{s_t1}, s{s_t3}
            s_and_b32 s{s_t3}, s{s_unit}, 3
            s_lshl_b32 s{s_t3}, s{s_t3}, 1
            s_add_u32 s{s_t3}, s{s_t3}, s{s_t2}
            s_mul_i32 s{s_t3}, s{s_t3}, 68
            s_add_u32 s{s_t3}, s{s_t3}, s{s_t0}
            s_mul_i32 s{s_t3}, s{s_t3}, 5
            s_add_u32 s{s_t3}, s{s_t3}, s{s_t1}
            s_lshl_b32 s{s_t3}, s{s_t3}, 10
            s_add_u32 s{s_t3}, s{s_t3}, {WF}
            s_waitcnt lgkmcnt(0)
            buffer_store_dwordx4 v[{ep+4*j}:{ep+4*j+3}], v{t+2}, s[{sWS}:{sWS+3}], s{s_t3} offen""")
        A.label(f"L_rl_skip_{tag}")

    def frag_addr(ch):
        A(f"""v_and_b32 v{t}, 31, v{l}
        v_lshrrev_b32 v{t+1}, 5, v{l}
        v_bfe_u32 v{t+2}, v{l}, 1, 3
        v_xor_b32 v{t+1}, v{t+1}, v{t+2}
        v_lshlrev_b32 v{t+1}, 4, v{t+1}
        v_lshl_add_u32 v{t+1}, v{t}, 7, v{t+1}
        s_lshl_b32 s{s_t0}, s{s_rt}, 12
        v_add_u32 v{aX}, s{s_t0}, v{t+1}""")
        for ks in range(1,4):
            A(f"v_xor_b32 v{aX+ks}, {ks<<5}, v{aX}")
        A(f"""v_lshrrev_b32 v{t}, 5, v{l}
        v_lshlrev_b32 v{t}, 3, v{t}
        v_bfe_u32 v{t+1}, v{l}, 2, 2
        v_add_u32 v{t}, v{t}, v{t+1}
        v_bfe_u32 v{t+2}, v{l}, 4, 1
        v_lshlrev_b32 v{t+2}, 5, v{t+2}
        v_and_b32 v{t+3}, 3, v{l}
        v_lshl_add_u32 v{t+2}, v{t+3}, 3, v{t+2}""")
        if ch == 0:
            A(f"""v_lshl_add_u32 v{t+2}, v{t}, 8, v{t+2}
            v_add_u32 v{t+2}, {WQR}, v{t+2}""")
            for s in range(4):
                A(f"""s_add_u32 s{s_tile+s}, s{s_rt}, {s}
                s_and_b32 s{s_tile+s}, s{s_tile+s}, 3
                v_xor_b32 v{t+3}, s{s_tile+s}, v{t+1}
                v_lshl_add_u32 v{aW+s}, v{t+3}, 6, v{t+2}""")
        else:
            A(f"""v_mul_u32_u24 v{t}, 192, v{t}
            v_add_u32 v{t+2}, v{t}, v{t+2}
            v_add_u32 v{t+2}, {WHR}, v{t+2}""")
            for s in range(3):
                A(f"""s_add_u32 s{s_tile+s}, s{s_rt}, {s}
                s_cmp_ge_u32 s{s_tile+s}, 3
                s_cselect_b32 s{s_t0}, 3, 0
                s_sub_u32 s{s_tile+s}, s{s_tile+s}, s{s_t0}
                s_cmp_ge_u32 s{s_tile+s}, 3
                s_cselect_b32 s{s_t0}, 3, 0
                s_sub_u32 s{s_tile+s}, s{s_tile+s}, s{s_t0}
                s_lshl_b32 s{s_t0}, s{s_tile+s}, 6
                v_add_u32 v{aW+s}, s{s_t0}, v{t+2}""")

    def reads(ch, c, ks, buf):
        st = c % 3; nt = 4 if ch == 0 else 3
        r = [f"ds_read_b128 v[{XF+4*buf}:{XF+4*buf+3}], v{aX+ks} offset:{st*16384}"]
        for s in range(nt):
            w = WFr + 16*buf + 4*s
            for rd in range(2):
                off = st*16384 + (16*ks+4*rd)*256 if ch == 0 else st*12288 + (16*ks+4*rd)*192
                r.append(f"ds_read_b64_tr_b16 v[{w+2*rd}:{w+2*rd+1}], v{aW+s} offset:{off}")
        return r

    def mainloop(ch, vtype, nrl):
        nt = 4 if ch == 0 else 3
        n = 5 if ch == 0 else 6
        ST(1)
        A(f"s_waitcnt vmcnt({2*n+nrl})")
        A("s_barrier")
        for x in reads(ch, 0, 0, 0): A(x)
        ST(2)
        for c in range(NCH):
            for ks in range(4):
                buf = ks & 1
                xf = XF+4*buf
                def mf(s):
                    w = WFr+16*buf+4*s; acc = ACC+16*s
                    cc = f"v[{acc}:{acc+15}]" if not (c == 0 and ks == 0) else "0"
                    if vtype: A(f"v_mfma_f32_32x32x16_bf16 v[{acc}:{acc+15}], v[{xf}:{xf+3}], v[{w}:{w+3}], {cc}")
                    else:     A(f"v_mfma_f32_32x32x16_bf16 v[{acc}:{acc+15}], v[{w}:{w+3}], v[{xf}:{xf+3}], {cc}")
                def stats():
                    w = WFr+16*buf
                    out = []
                    for j in range(4):
                        if ch == 0: out.append(f"v_dot2c_f32_bf16 v{v_sum}, s{s_ones}, v{xf+j}")
                        else:       out.append(f"v_dot2c_f32_bf16 v{v_sum}, v{xf+j}, v{xf+j}")
                        out.append(f"v_dot2c_f32_bf16 v{v_cs}, s{s_ones}, v{w+j}")
                    return out
                if ks < 3:
                    nxt = reads(ch, c, ks+1, buf^1)
                    A("s_waitcnt lgkmcnt(0)")
                    st_ = stats()
                    mf(0)
                    for x in nxt[:5]: A(x)
                    mf(1)
                    for x in nxt[5:]: A(x)
                    for s in range(2, nt):
                        mf(s)
                        for x in st_[(s-2)*4:(s-1)*4 if s < nt-1 else 8]: A(x)
                else:
                    A("s_waitcnt lgkmcnt(0)")
                    if c < NCH-1:
                        extra = nrl if c <= 1 else 0
                        infl = n if c+2 < NCH else 0
                        A(f"s_waitcnt vmcnt({infl+extra})")
                        A("s_barrier")
                    st_ = stats()
                    mf(0)
                    if c+3 < NCH: dma_chunk(c % 3, ch)
                    nxt = reads(ch, c+1, 0, buf^1) if c < NCH-1 else []
                    for x in nxt[:5]: A(x)
                    mf(1)
                    for x in nxt[5:]: A(x)
                    for s in range(2, nt):
                        mf(s)
                        for x in st_[(s-2)*4:(s-1)*4 if s < nt-1 else 8]: A(x)

    def finalize_stats(ch):
        a=vt; b=vt+1
        A(f"""v_mov_b32 v{a}, v{v_sum}
        v_mov_b32 v{b}, v{v_cs}
        v_permlane32_swap_b32 v{v_sum}, v{a}
        v_permlane32_swap_b32 v{v_cs}, v{b}
        v_add_f32 v{v_sum}, v{v_sum}, v{a}
        v_add_f32 v{v_cs}, v{v_cs}, v{b}
        v_and_b32 v{a}, 31, v{l}
        v_lshlrev_b32 v{a}, 2, v{a}
        s_lshl_b32 s{s_t0}, s{s_rt}, 7
        s_add_u32 s{s_t0}, s{s_t0}, {STR + ch*512}
        v_add_u32 v{b}, s{s_t0}, v{a}
        ds_write_b32 v{b}, v{v_sum}
        s_lshl_b32 s{s_t0}, s{s_tile}, 7
        s_add_u32 s{s_t0}, s{s_t0}, {CSR + ch*512}
        v_add_u32 v{b}, s{s_t0}, v{a}
        ds_write_b32 v{b}, v{v_cs}
        s_waitcnt lgkmcnt(0)
        s_barrier""")
        mean=vt+2; rs=vt+4
        A(f"""s_lshl_b32 s{s_t0}, s{s_rt}, 7
        s_add_u32 s{s_t0}, s{s_t0}, {STR}
        v_add_u32 v{b}, s{s_t0}, v{a}
        ds_read_b32 v{mean}, v{b}
        ds_read_b32 v{rs}, v{b} offset:512
        s_waitcnt lgkmcnt(0)
        v_mul_f32 v{mean}, {hx(f2u(1.0/640))}, v{mean}
        v_mul_f32 v{rs}, {hx(f2u(1.0/640))}, v{rs}
        v_fma_f32 v{rs}, -v{mean}, v{mean}, v{rs}
        v_max_f32 v{rs}, 0, v{rs}
        v_cvt_pk_bf16_f32 v{rs}, v{rs}, v{mean}
        v_and_b32 v{mean}, 0xffff0000, v{rs}
        v_lshlrev_b32 v{rs}, 16, v{rs}
        v_add_f32 v{rs}, {hx(f2u(1e-5))}, v{rs}
        v_cvt_pk_bf16_f32 v{rs}, v{rs}, v{rs}
        v_lshlrev_b32 v{rs}, 16, v{rs}
        v_sqrt_f32 v{rs}, v{rs}
        v_cvt_pk_bf16_f32 v{rs}, v{rs}, v{rs}
        v_lshlrev_b32 v{rs}, 16, v{rs}
        v_rcp_f32 v{rs}, v{rs}""")
        return mean, rs

    for stg in range(3): dma_chunk(stg, 0)
    A(f"s_mov_b32 s{s_u}, s2")
    rl_setup_and_issue(s_u)
    A(f"s_mov_b32 s{s_ones}, 0x3f803f80")
    A(f"v_mov_b32 v{v_sum}, 0\nv_mov_b32 v{v_cs}, 0")
    frag_addr(0)
    A(f"s_cmp_eq_u32 s{s_ty}, 2")
    A(f"s_cbranch_scc1 L_g1_vtype")
    mainloop(0, False, 3)
    ST(3)
    mean, rs = finalize_stats(0)
    A(f"s_cmp_eq_u32 s{s_ty}, 3")
    A(f"s_cbranch_scc1 L_g1_rl")
    A(f"""s_cmp_eq_u32 s{s_ty}, 0
    s_cselect_b32 s{s_t0}, {hx(f2u(QSCALE))}, {hx(f2u(1.0))}
    v_mul_f32 v{rs}, s{s_t0}, v{rs}
    v_lshrrev_b32 v{vt}, 5, v{l}
    v_lshlrev_b32 v{vt}, 4, v{vt}
    v_add_u32 v{vt}, {CSR}, v{vt}
    v_lshlrev_b32 v{vt+1}, 4, v{l}
    s_mul_i32 s{s_t1}, s{s_ty}, {KF}
    s_lshl_b32 s{s_t2}, s{s_rb}, 2
    s_add_u32 s{s_t2}, s{s_t2}, s{s_rt}
    s_mul_i32 s{s_t2}, s{s_t2}, 80
    s_lshl_b32 s{s_t3}, s{s_gl}, 4
    s_add_u32 s{s_t2}, s{s_t2}, s{s_t3}
    s_lshl_b32 s{s_t2}, s{s_t2}, 9
    s_add_u32 s{s_t1}, s{s_t1}, s{s_t2}""")
    for s in range(4):
        cs = ep + 16*(s&1); acc = ACC+16*s; pk = ep+32+8*(s&1)
        A(f"s_lshl_b32 s{s_t0}, s{s_tile+s}, 7")
        A(f"v_add_u32 v{vt+6}, s{s_t0}, v{vt}")
        for g in range(4): A(f"ds_read_b128 v[{cs+4*g}:{cs+4*g+3}], v{vt+6} offset:{g*32}")
        A("s_waitcnt lgkmcnt(0)")
        for j in range(8):
            A(f"v_pk_fma_f32 v[{acc+2*j}:{acc+2*j+1}], v[{cs+2*j}:{cs+2*j+1}], v[{mean}:{mean+1}], v[{acc+2*j}:{acc+2*j+1}] op_sel_hi:[1,0,1] neg_lo:[0,1,0] neg_hi:[0,1,0]")
        for j in range(8):
            A(f"v_pk_mul_f32 v[{acc+2*j}:{acc+2*j+1}], v[{acc+2*j}:{acc+2*j+1}], v[{rs}:{rs+1}] op_sel_hi:[1,0]")
        for j in range(8):
            A(f"v_cvt_pk_bf16_f32 v{pk+j}, v{acc+2*j}, v{acc+2*j+1}")
        A(f"""v_permlane32_swap_b32 v{pk}, v{pk+2}
        v_permlane32_swap_b32 v{pk+1}, v{pk+3}
        v_permlane32_swap_b32 v{pk+4}, v{pk+6}
        v_permlane32_swap_b32 v{pk+5}, v{pk+7}
        s_lshl_b32 s{s_t0}, s{s_tile+s}, 11
        s_add_u32 s{s_t0}, s{s_t0}, s{s_t1}
        buffer_store_dwordx4 v[{pk}:{pk+3}], v{vt+1}, s[{sWS}:{sWS+3}], s{s_t0} offen
        buffer_store_dwordx4 v[{pk+4}:{pk+7}], v{vt+1}, s[{sWS}:{sWS+3}], s{s_t0} offen offset:1024""")
    A("s_branch L_g1_rl")
    A.label("L_g1_vtype")
    mainloop(0, True, 3)
    ST(3)
    mean, rs = finalize_stats(0)
    a=vt; b=vt+1
    mr = ep+32
    A(f"""v_and_b32 v{a}, 31, v{l}
    v_lshlrev_b32 v{a}, 2, v{a}
    s_lshl_b32 s{s_t0}, s{s_rt}, 7
    s_add_u32 s{s_t0}, s{s_t0}, {RWR}
    v_add_u32 v{b}, s{s_t0}, v{a}
    ds_write_b32 v{b}, v{mean}
    ds_write_b32 v{b}, v{rs} offset:512
    v_lshrrev_b32 v{b}, 5, v{l}
    v_lshlrev_b32 v{b}, 4, v{b}
    v_add_u32 v{b}, s{s_t0}, v{b}
    s_waitcnt lgkmcnt(0)""")
    for g in range(4):
        A(f"ds_read_b128 v[{mr+4*g}:{mr+4*g+3}], v{b} offset:{g*32}")
        A(f"ds_read_b128 v[{mr+16+4*g}:{mr+16+4*g+3}], v{b} offset:{512+g*32}")
    A(f"""v_lshrrev_b32 v{b}, 5, v{l}
    v_mul_u32_u24 v{b}, 10240, v{b}
    v_lshl_add_u32 v{b}, v{a}, 2, v{b}
    s_lshl_b32 s{s_t2}, s{s_rb}, 2
    s_add_u32 s{s_t2}, s{s_t2}, s{s_rt}
    s_mul_i32 s{s_t2}, s{s_t2}, 40960
    s_lshl_b32 s{s_t3}, s{s_gl}, 11
    s_add_u32 s{s_t1}, s{s_t2}, s{s_t3}
    s_add_u32 s{s_t1}, s{s_t1}, {VF}
    v_add_u32 v{a}, {CSR}, v{a}""")
    for s in range(4):
        acc = ACC+16*s; pk = ep+8*(s&1); csv = vt+2+2*(s&1)
        A(f"s_lshl_b32 s{s_t0}, s{s_tile+s}, 7")
        A(f"v_add_u32 v{vt+6}, s{s_t0}, v{a}")
        A(f"ds_read_b32 v{csv}, v{vt+6}")
        A("s_waitcnt lgkmcnt(0)")
        for j in range(8):
            A(f"v_pk_fma_f32 v[{acc+2*j}:{acc+2*j+1}], v[{mr+2*j}:{mr+2*j+1}], v[{csv}:{csv+1}], v[{acc+2*j}:{acc+2*j+1}] op_sel_hi:[1,0,1] neg_lo:[0,1,0] neg_hi:[0,1,0]")
        for j in range(8):
            A(f"v_pk_mul_f32 v[{acc+2*j}:{acc+2*j+1}], v[{acc+2*j}:{acc+2*j+1}], v[{mr+16+2*j}:{mr+16+2*j+1}]")
        for j in range(8):
            A(f"v_cvt_pk_bf16_f32 v{pk+j}, v{acc+2*j}, v{acc+2*j+1}")
        A(f"""s_lshl_b32 s{s_t0}, s{s_tile+s}, 9
        s_add_u32 s{s_t0}, s{s_t0}, s{s_t1}
        buffer_store_dwordx4 v[{pk}:{pk+3}], v{b}, s[{sWS}:{sWS+3}], s{s_t0} offen
        s_add_u32 s{s_t0}, s{s_t0}, 20480
        buffer_store_dwordx4 v[{pk+4}:{pk+7}], v{b}, s[{sWS}:{sWS+3}], s{s_t0} offen""")
    A.label("L_g1_rl")
    ST(4)
    rl_process(s_u, "a")
    A(f"s_cmp_eq_u32 s{s_ty}, 3")
    A(f"s_cbranch_scc0 L_g1_end0")
    A("s_waitcnt lgkmcnt(0)")
    A("s_barrier")
    A(f"s_add_u32 s{s_u}, s{s_rb}, 256")
    rl_setup_and_issue(s_u)
    A("s_waitcnt vmcnt(0)")
    A("s_barrier")
    rl_process(s_u, "b")
    A.label("L_g1_end0")
    ST(5)
    ST.dump(sWS, None, vt, 0) if False else None
    A("s_branch L_g1_fin")

    A.label("L_g1_ch1")
    for stg in range(3): dma_chunk(stg, 1)
    A(f"""v_lshlrev_b32 v{vt}, 2, v{l}
    s_mul_i32 s{s_t0}, s{s_g}, 192
    buffer_load_dword v{vt+7}, v{vt}, s[{sB1}:{sB1+3}], s{s_t0} offen""")
    A(f"s_mov_b32 s{s_ones}, 0x3f803f80")
    A(f"v_mov_b32 v{v_sum}, 0\nv_mov_b32 v{v_cs}, 0")
    A(f"v_mov_b32 v{ep+63}, 0")
    frag_addr(1)
    mainloop(1, False, 1)
    ST(3)
    A(f"""v_lshlrev_b32 v{vt}, 16, v{vt+7}
    v_and_b32 v{vt+1}, 0xffff0000, v{vt+7}
    v_lshlrev_b32 v{vt+2}, 3, v{l}
    v_add_u32 v{vt+2}, {B1R}, v{vt+2}
    v_cmp_gt_u32 vcc, 48, v{l}
    s_and_saveexec_b64 s[{s_ex}:{s_ex+1}], vcc
    ds_write_b64 v{vt+2}, v[{vt}:{vt+1}]
    s_mov_b64 exec, s[{s_ex}:{s_ex+1}]""")
    mean, rs = finalize_stats(1)
    nmr = vt+2
    A(f"v_mul_f32 v{mean}, v{mean}, v{rs}")
    A(f"""v_bfe_u32 v{vt}, v{l}, 4, 1
    v_lshlrev_b32 v{vt}, 10, v{vt}
    v_lshrrev_b32 v{vt+1}, 5, v{l}
    v_lshlrev_b32 v{vt+1}, 4, v{vt+1}
    v_and_b32 v{vt+6}, 15, v{l}
    v_add_u32 v{vt+6}, v{vt+6}, v{vt+1}
    v_lshl_add_u32 v{vt}, v{vt+6}, 4, v{vt}
    s_lshl_b32 s{s_t2}, s{s_rb}, 2
    s_add_u32 s{s_t2}, s{s_t2}, s{s_rt}
    s_lshr_b32 s{s_t3}, s{s_t2}, 1
    s_mul_i32 s{s_t3}, s{s_t3}, 68
    s_mul_i32 s{s_t1}, s{s_g}, 3
    s_add_u32 s{s_t3}, s{s_t3}, s{s_t1}
    s_lshl_b32 s{s_t3}, s{s_t3}, 12
    s_and_b32 s{s_t2}, s{s_t2}, 1
    s_lshl_b32 s{s_t2}, s{s_t2}, 11
    s_add_u32 s{s_t3}, s{s_t3}, s{s_t2}
    s_add_u32 s{s_t1}, s{s_t3}, {AF}""")
    c0 = -2.0*0.7978845608028654*LOG2E; c1 = c0*0.044715
    A(f"s_mov_b32 s{s_t2}, {hx(f2u(c1))}\ns_mov_b32 s{s_t3}, {hx(f2u(c0))}")
    A(f"v_mov_b32 v{ep+60}, s{s_t3}\nv_mov_b32 v{ep+62}, s{s_t2}")
    A(f"v_add_u32 v{vt+1}, {CSR+512}, v{vt+1}")
    for s in range(3):
        cs = ep; bb = ep+16; acc = ACC+16*s; tmp = ep+32; pk = ep+48
        A(f"s_lshl_b32 s{s_t0}, s{s_tile+s}, 7")
        A(f"v_add_u32 v{vt+6}, s{s_t0}, v{vt+1}")
        for g in range(4):
            A(f"ds_read_b128 v[{cs+4*g}:{cs+4*g+3}], v{vt+6} offset:{g*32}")
            A(f"ds_read_b128 v[{bb+4*g}:{bb+4*g+3}], v{vt+6} offset:{B1R-(CSR+512)+g*32}")
        A("s_waitcnt lgkmcnt(0)")
        for j in range(8):
            A(f"v_pk_fma_f32 v[{bb+2*j}:{bb+2*j+1}], v[{cs+2*j}:{cs+2*j+1}], v[{mean}:{mean+1}], v[{bb+2*j}:{bb+2*j+1}] op_sel_hi:[1,0,1] neg_lo:[0,1,0] neg_hi:[0,1,0]")
        for j in range(8):
            A(f"v_pk_fma_f32 v[{acc+2*j}:{acc+2*j+1}], v[{acc+2*j}:{acc+2*j+1}], v[{rs}:{rs+1}], v[{bb+2*j}:{bb+2*j+1}] op_sel_hi:[1,0,1]")
        for j in range(8):
            A(f"v_pk_mul_f32 v[{tmp+2*j}:{tmp+2*j+1}], v[{acc+2*j}:{acc+2*j+1}], v[{acc+2*j}:{acc+2*j+1}]")
        for j in range(8):
            A(f"v_pk_fma_f32 v[{tmp+2*j}:{tmp+2*j+1}], v[{tmp+2*j}:{tmp+2*j+1}], v[{ep+62}:{ep+63}], v[{ep+60}:{ep+61}] op_sel_hi:[1,0,0]")
        for j in range(8):
            A(f"v_pk_mul_f32 v[{tmp+2*j}:{tmp+2*j+1}], v[{tmp+2*j}:{tmp+2*j+1}], v[{acc+2*j}:{acc+2*j+1}]")
        for j in range(16):
            A(f"v_exp_f32 v{tmp+j}, v{tmp+j}")
        for j in range(8):
            A(f"v_pk_add_f32 v[{tmp+2*j}:{tmp+2*j+1}], v[{tmp+2*j}:{tmp+2*j+1}], 1.0 op_sel_hi:[1,0]")
        for j in range(16):
            A(f"v_rcp_f32 v{tmp+j}, v{tmp+j}")
        for j in range(8):
            A(f"v_pk_mul_f32 v[{acc+2*j}:{acc+2*j+1}], v[{acc+2*j}:{acc+2*j+1}], v[{tmp+2*j}:{tmp+2*j+1}]")
        for j in range(8):
            A(f"v_cvt_pk_bf16_f32 v{pk+j}, v{acc+2*j}, v{acc+2*j+1}")
        A(f"""s_lshl_b32 s{s_t0}, s{s_tile+s}, 12
        s_add_u32 s{s_t0}, s{s_t0}, s{s_t1}
        buffer_store_dwordx4 v[{pk}:{pk+3}], v{vt}, s[{sWS}:{sWS+3}], s{s_t0} offen
        buffer_store_dwordx4 v[{pk+4}:{pk+7}], v{vt}, s[{sWS}:{sWS+3}], s{s_t0} offen offset:512""")
    A(f"s_cmp_eq_u32 s{s_ty}, 3")
    A(f"s_cbranch_scc0 L_g1_fin")
    A("s_barrier")
    A("s_barrier")
    A.label("L_g1_fin")
    if prof:
        ST(6)
        A("s_waitcnt vmcnt(0)")
        ST(7)
        A(f"s_lshl_b32 s{s_t0}, s2, 3\ns_add_u32 s{s_t0}, s{s_t0}, s{s_w}")
        ST.dump(sWS, s_t0, vt, 0)
    A.label("L_g1_done")
    A("s_endpgm")
    return V.hi
```

```python
from common import *
from att import VM
G3_BLOCK = 256
G3_LDS = 61440

def gen_g3(A, name="g3_kernel", prof=False, NST=4, **kw):
    kernel_header(A, name)
    V = Regs(1, 256, "v"); Sg = Regs(8, 100, "s")
    sWS = Sg.alloc(4,4); sX = Sg.alloc(4,4); sB2 = Sg.alloc(4,4); sO = Sg.alloc(4,4)
    pX = Sg.alloc(2,2); pB2 = Sg.alloc(2,2); pO = Sg.alloc(2,2); pWS = Sg.alloc(2,2)
    s_w = Sg.alloc(); s_rb = Sg.alloc(); s_cb = Sg.alloc(); s_t = Sg.alloc(4); s_a = Sg.alloc(); s_b = Sg.alloc(); s_xo = Sg.alloc()
    ST = Stamp(A, prof, Sg.alloc(10,2), 8)
    l = V.alloc()
    vA = V.alloc(4); vW = V.alloc(); vW4 = V.alloc(); vXo = V.alloc(); vL = V.alloc(3)
    XR_ = V.alloc(10,2); BR = V.alloc(10,2)
    ACC = V.alloc(80,4)
    STG = V.alloc(36*NST,4)
    A(f"s_cmp_ge_u32 s2, 256")
    A(f"s_cbranch_scc1 L_g3_done")
    A(f"s_load_dwordx2 s[{pX}:{pX+1}], s[0:1], {KA['x']}")
    A(f"s_load_dwordx2 s[{pB2}:{pB2+1}], s[0:1], {KA['b2']}")
    A(f"s_load_dwordx2 s[{pO}:{pO+1}], s[0:1], {KA['out']}")
    A(f"s_load_dwordx2 s[{pWS}:{pWS+1}], s[0:1], {KA['ws']}")
    ST.init(); ST(0)
    A(f"""v_lshrrev_b32 v{l}, 6, v0
    v_readfirstlane_b32 s{s_w}, v{l}
    v_and_b32 v{l}, 63, v0
    s_and_b32 s{s_rb}, s2, 7
    s_lshl_b32 s{s_rb}, s{s_rb}, 2
    s_lshr_b32 s{s_t}, s2, 3
    s_and_b32 s{s_t}, s{s_t}, 3
    s_add_u32 s{s_rb}, s{s_rb}, s{s_t}
    s_lshr_b32 s{s_cb}, s2, 5
    v_lshlrev_b32 v{vW}, 4, v{l}
    v_add_u32 v{vW4}, 4096, v{vW}""")
    for s in range(4):
        A(f"""s_add_u32 s{s_t}, s{s_w}, {s}
        s_and_b32 s{s_t}, s{s_t}, 3
        s_lshl_b32 s{s_t+1}, s{s_t}, 10
        v_add_u32 v{vA+s}, s{s_t+1}, v{vW}""")
        if s >= 1:
            A(f"""s_mul_i32 s{s_t+1}, s{s_t}, {15*1024}
            s_add_u32 s{s_t+1}, s{s_t+1}, {(s-1)*5*1024}
            v_add_u32 v{vL+s-1}, s{s_t+1}, v{vW}""")
    A(f"""s_mul_i32 s{s_a}, s{s_rb}, 68
    s_add_u32 s{s_a}, s{s_a}, s{s_w}
    s_lshl_b32 s{s_a}, s{s_a}, 12
    s_add_u32 s{s_a}, s{s_a}, {AF}
    s_mul_i32 s{s_b}, s{s_cb}, 68
    s_add_u32 s{s_b}, s{s_b}, s{s_w}
    s_mul_i32 s{s_b}, s{s_b}, 5120
    s_add_u32 s{s_b}, s{s_b}, {WF}""")
    A(f"""v_and_b32 v{vXo}, 15, v{l}
    v_mul_u32_u24 v{vXo}, 1280, v{vXo}
    v_lshrrev_b32 v{XR_}, 4, v{l}
    v_lshlrev_b32 v{XR_}, 3, v{XR_}
    v_add_u32 v{vXo}, v{vXo}, v{XR_}
    s_lshl_b32 s{s_xo}, s{s_rb}, 2
    s_add_u32 s{s_xo}, s{s_xo}, s{s_w}
    s_mul_i32 s{s_xo}, s{s_xo}, {16*1280}
    s_mul_i32 s{s_t}, s{s_cb}, 160
    s_add_u32 s{s_xo}, s{s_xo}, s{s_t}
    v_mov_b32 v{XR_+1}, v{XR_}
    s_waitcnt lgkmcnt(0)""")
    srd(A, sWS, pWS, WS_REC); srd(A, sX, pX, S*D*2); srd(A, sB2, pB2, D*2); srd(A, sO, pO, S*D*2)
    vm = VM()
    def stage_loads(k):
        b = STG + 36*(k % NST)
        out = []
        for s in range(4):
            out.append(f"buffer_load_dwordx4 v[{b+4*s}:{b+4*s+3}], v{vA+s}, s[{sWS}:{sWS+3}], s{s_a} offen")
        for nt in range(5):
            if nt < 4: out.append(f"buffer_load_dwordx4 v[{b+16+4*nt}:{b+16+4*nt+3}], v{vW}, s[{sWS}:{sWS+3}], s{s_b} offen offset:{nt*1024}")
            else:      out.append(f"buffer_load_dwordx4 v[{b+16+4*nt}:{b+16+4*nt+3}], v{vW4}, s[{sWS}:{sWS+3}], s{s_b} offen")
        adv = [f"s_add_u32 s{s_a}, s{s_a}, {4*4096}", f"s_add_u32 s{s_b}, s{s_b}, {4*5120}"]
        return out, adv
    NK = 17
    for k in range(NST-1):
        ld, adv = stage_loads(k)
        for x in ld: A(x); vm.issue(f"S{k}")
        for x in adv: A(x)
    for nt in range(5):
        A(f"buffer_load_dwordx2 v[{BR+2*nt}:{BR+2*nt+1}], v{XR_+1}, s[{sB2}:{sB2+3}], s{s_t} offen offset:{nt*32}"); vm.issue("B")
    A(f"v_mov_b32 v{vL+0}, v{vL+0}")
    xs = [f"buffer_load_dwordx2 v[{XR_+2*nt}:{XR_+2*nt+1}], v{vXo}, s[{sX}:{sX+3}], s{s_xo} offen offset:{nt*32}" for nt in range(5)]
    ST()
    xdone = False
    for k in range(NK):
        b = STG + 36*(k % NST)
        vm.wait(A, f"S{k}")
        if k == 1:
            vm.wait(A, "B")
            for x in xs: A(x); vm.issue("X")
        ld, adv = stage_loads(k + NST - 1) if k + NST - 1 < NK else ([], [])
        j = 0
        for nt in range(5):
            for s in range(4):
                acc = ACC + (s*5+nt)*4
                c = "0" if k == 0 else f"v[{acc}:{acc+3}]"
                A(f"v_mfma_f32_16x16x32_bf16 v[{acc}:{acc+3}], v[{b+16+4*nt}:{b+16+4*nt+3}], v[{b+4*s}:{b+4*s+3}], {c}")
                if (nt*4+s) % 2 == 1 and j < len(ld):
                    A(ld[j]); vm.issue(f"S{k+NST-1}"); j += 1
        assert j == len(ld)
        for x in adv: A(x)
    ST()
    for s in range(1, 4):
        for nt in range(5):
            acc = ACC + (s*5+nt)*4
            A(f"ds_write_b128 v{vL+s-1}, v[{acc}:{acc+3}] offset:{nt*1024}")
    A(f"s_mul_i32 s{s_t+1}, s{s_w}, {15*1024}")
    A(f"v_add_u32 v{vW4}, s{s_t+1}, v{vW}")
    A("s_waitcnt lgkmcnt(0)")
    A("s_barrier")
    T = STG
    for j in range(15):
        A(f"ds_read_b128 v[{T+4*j}:{T+4*j+3}], v{vW4} offset:{j*1024}")
    vm.wait(A, "X")
    T2 = STG + 64
    for nt in range(5):
        for h in range(2):
            xr = XR_+2*nt+h; br = BR+2*nt+h; d = T2 + nt*4 + 2*h
            A(f"""v_lshlrev_b32 v{d}, 16, v{xr}
            v_and_b32 v{d+1}, 0xffff0000, v{xr}
            v_lshlrev_b32 v{xr}, 16, v{br}
            v_and_b32 v{br}, 0xffff0000, v{br}
            v_add_f32 v{d}, v{d}, v{xr}
            v_add_f32 v{d+1}, v{d+1}, v{br}""")
    for sp in range(3):
        A(f"s_waitcnt lgkmcnt({10 - 5*sp})")
        for nt in range(5):
            acc = ACC + nt*4; tt = T + (sp*5+nt)*4
            for h in range(2):
                A(f"v_pk_add_f32 v[{acc+2*h}:{acc+2*h+1}], v[{acc+2*h}:{acc+2*h+1}], v[{tt+2*h}:{tt+2*h+1}]")
    for nt in range(5):
        acc = ACC + nt*4; d = T2 + nt*4
        for h in range(2):
            A(f"v_pk_add_f32 v[{acc+2*h}:{acc+2*h+1}], v[{acc+2*h}:{acc+2*h+1}], v[{d+2*h}:{d+2*h+1}]")
        A(f"v_cvt_pk_bf16_f32 v{d}, v{acc}, v{acc+1}")
        A(f"v_cvt_pk_bf16_f32 v{d+1}, v{acc+2}, v{acc+3}")
        A(f"buffer_store_dwordx2 v[{d}:{d+1}], v{vXo}, s[{sO}:{sO+3}], s{s_xo} offen offset:{nt*32}")
    if prof:
        ST(6)
        A("s_waitcnt vmcnt(0)")
        ST(7)
        A(f"s_lshl_b32 s{s_t}, s2, 3\ns_add_u32 s{s_t}, s{s_t}, s{s_w}")
        ST.dump(sWS, s_t, 2, 2)
    A.label("L_g3_done")
    A("s_endpgm")
    return V.hi
```
